```python
import torch

def _softmax(x, axis=-1):
    return torch.softmax(x, dim=axis)
def _gelu(x):
    return torch.nn.functional.gelu(x, approximate="tanh")
def _silu(x):
    return torch.nn.functional.silu(x)
def _sigmoid(x):
    return torch.sigmoid(x)
def _layernorm(x, axis=-1, eps=1e-5):
    m = x.mean(dim=axis, keepdim=True)
    v = x.var(dim=axis, keepdim=True, unbiased=False)
    return (x - m) / torch.sqrt(v + eps)
def _scatter_add(tgt, idx, src, axis=0):
    return tgt.clone().index_add_(axis, idx, src)
def _segment_sum(src, seg, n):
    out = torch.zeros((n,) + src.shape[1:], dtype=src.dtype)
    return out.index_add_(0, seg, src)
def _pad(x, pw):
    flat = tuple(v for pair in reversed(pw) for v in pair)
    return torch.nn.functional.pad(x, flat)

kernel_name = 'parallel_sum__mha_block_cached__glu_gated_bilinear__decode'

def setup_inputs():

    _w = (lambda a: (lambda t: t.to(torch.bfloat16) if t.is_floating_point() else t)(torch.as_tensor(a)))
    def _A_setup():
        B, Sq, D = 8, 1, 1024
        H, Sk, Dh = 32, 4096, 128
        return {
            "x": _w((lambda *s: torch.randn(*s, dtype=torch.bfloat16) * 0.05)(B, Sq, D)),
            "k_cache": _w((lambda *s: torch.randn(*s, dtype=torch.bfloat16) * 1.6)(B, H, Sk, Dh)),
            "v_cache": _w((lambda *s: torch.randn(*s, dtype=torch.bfloat16) * 0.8)(B, H, Sk, Dh)),
            "wq": _w((lambda *s: torch.randn(*s, dtype=torch.bfloat16) * 1.6)(D, H * Dh) * (D ** -0.5)),
            "wo": _w((lambda *s: torch.randn(*s, dtype=torch.bfloat16) * 0.8)(H * Dh, D) * ((H * Dh) ** -0.5)),
        }
    _A_in = _A_setup()

    def _B_setup():
        B, S, D, F = 8, 1, 1024, 3584
        return {
            "x": _w((lambda *s: torch.randn(*s, dtype=torch.bfloat16) * 0.05)(B, S, D)),
            "w_gate": _w((lambda *s: torch.randn(*s, dtype=torch.bfloat16) * 0.4)(D, F) * (D ** -0.5)),
            "w_up": _w((lambda *s: torch.randn(*s, dtype=torch.bfloat16) * 0.4)(D, F) * (D ** -0.5)),
            "w_down": _w((lambda *s: torch.randn(*s, dtype=torch.bfloat16) * 0.4)(F, D) * (F ** -0.5)),
        }
    _B_in = _B_setup()

    return {
        "A_x": _A_in["x"],
        "A_k_cache": _A_in["k_cache"],
        "A_v_cache": _A_in["v_cache"],
        "A_wq": _A_in["wq"],
        "A_wo": _A_in["wo"],
        "B_x": _B_in["x"],
        "B_w_gate": _B_in["w_gate"],
        "B_w_up": _B_in["w_up"],
        "B_w_down": _B_in["w_down"],
    }

def reference(A_x, A_k_cache, A_v_cache, A_wq, A_wo, B_x, B_w_gate, B_w_up, B_w_down):
    def _A_ref(x, k_cache, v_cache, wq, wo):
        B, Sq, D = x.shape
        H, Dh = 32, 128
        q = (lambda x, *d: x.permute(*d))((x @ wq).reshape(B, Sq, H, Dh), 0, 2, 1, 3)
        scores = torch.einsum("bhqd,bhkd->bhqk", q, k_cache) * (Dh ** -0.5)
        p = _softmax(scores, axis=-1)
        o = torch.einsum("bhqk,bhkd->bhqd", p, v_cache)
        return (lambda x, *d: x.permute(*d))(o, 0, 2, 1, 3).reshape(B, Sq, H * Dh) @ wo

    def _B_ref(x, w_gate, w_up, w_down):
        g = torch.einsum("bsd,df->bsf", x, w_gate)
        u = torch.einsum("bsd,df->bsf", x, w_up)
        h = g * u
        return torch.einsum("bsf,fd->bsd", h, w_down)

    x = A_x
    xn = _layernorm(x, axis=-1)
    return x + _A_ref(xn, A_k_cache, A_v_cache, A_wq, A_wo) + _B_ref(xn, B_w_gate, B_w_up, B_w_down)
```

```python
import sys, struct

KN = "parallel_sum__mha_block_cached__glu_gated_bilinear__decode_kernel"

def f2u(f):
    return struct.unpack("<I", struct.pack("<f", f))[0]

WS_QP = 0x000000
WS_GP = 0x100000
WS_ZO = 0x300000
WS_ZH = 0x310000
WS_OP = 0x400000
WS_SIZE = 0x800000
WS_STAMP = 0x20000000

L_T0, L_T1, L_T2, L_T3 = 0, 32768, 65536, 98304
L_XN = 131072
L_Q = L_XN + 8 * 272
L_PO = L_Q + 8 * 256
NSLOT = 2
L_PML = L_PO + NSLOT * 4 * 512
L_SYNC = L_PML + NSLOT * 4 * 8
S_AUXBAR, S_QRDY, S_PROG, S_WO, S_PCNT = 0, 4, 8, 12, 16
L_DESC = L_SYNC + 64
L_END = L_DESC + 256
LDS_BYTES = (L_END + 255) // 256 * 256

NK = 8
ITEM_BYTES = NK * 4 * 1024
NITEMS = (1 << 20) // ITEM_BYTES
D_VALID, D_SWITCH, D_END = 1, 2, 4
OOB = 0x20000000
SPIN_CAP = 20000

class Gen:
    def __init__(self, stamps=False, dist=2, wo_trig=NITEMS - 2):
        self.o = []
        self.stamps = stamps
        self.lab = 0
        self.wo_trig = wo_trig
    def e(self, s):
        self.o.append("    " + s)
    def c(self, s):
        self.o.append("    ; " + s)
    def L(self, name):
        self.o.append(name + ":")
    def newlab(self, p="L"):
        self.lab += 1
        return f"{p}_{self.lab}"
    def nop(self, n):
        if n > 0:
            self.e(f"s_nop {n-1}")

    def srd(self, d, ptr, nbytes):
        e = self.e
        e(f"s_mov_b32 s{d}, s{ptr}"); e(f"s_mov_b32 s{d+1}, s{ptr+1}")
        e(f"s_mov_b32 s{d+2}, {nbytes:#x}"); e(f"s_mov_b32 s{d+3}, 0x20000")

    def lds_wait_ge(self, vaddr, off, target, vt, st, sleep=1):
        e = self.e
        l0, l1 = self.newlab("Lw"), self.newlab("Lwd")
        self.L(l0)
        e(f"ds_read_b32 {vt}, {vaddr} offset:{off}")
        e("s_waitcnt lgkmcnt(0)")
        e(f"v_readfirstlane_b32 {st}, {vt}")
        e("s_nop 0")
        e(f"s_cmp_ge_u32 {st}, {target}")
        e(f"s_cbranch_scc1 {l1}")
        e(f"s_sleep {sleep}")
        e(f"s_branch {l0}")
        self.L(l1)

    def lds_add1(self, vaddr, off, vone, ssave):
        e = self.e
        e(f"s_mov_b64 {ssave}, exec")
        e("s_mov_b64 exec, 1")
        e(f"ds_add_u32 {vaddr}, {vone} offset:{off}")
        e(f"s_mov_b64 exec, {ssave}")

    def stamp(self, idx):
        if not self.stamps:
            return
        e = self.e
        e("s_memrealtime s[90:91]")
        e("s_waitcnt lgkmcnt(0)")
        e("v_mov_b32 v250, s90"); e("v_mov_b32 v251, s91")
        e(f"v_mov_b32 v252, s88")
        e("s_mov_b64 s[92:93], exec"); e("s_mov_b64 exec, 1")
        e(f"buffer_store_dwordx2 v[250:251], v252, s[84:87], 0 offen offset:{idx*8}")
        e("s_mov_b64 exec, s[92:93]")

    def bf16r(self, d, s):
        self.e(f"v_cvt_pk_bf16_f32 {d}, 0, {s}")

    def build(self):
        e, c, L = self.e, self.c, self.L
        hdr = []
        hdr.append(f"; @launch grid=(256,1,1) block=(512,1,1) lds={LDS_BYTES}")
        hdr.append('.amdgcn_target "amdgcn-amd-amdhsa--gfx950"')
        hdr += [".text", f".globl {KN}", ".p2align 8", f".type {KN},@function", f"{KN}:"]
        e("s_cmp_ge_u32 s2, 256"); e("s_cbranch_scc1 L_done")
        c("kernarg: s16 x, s18 K, s20 V, s22 wq, s24 wo, s26 Bx, s28 wg, s30 wu, s32 wd, s34 out, s36 dbg, s38 ws")
        e("s_load_dwordx16 s[16:31], s[0:1], 0")
        e("s_load_dwordx8 s[32:39], s[0:1], 64")
        e("v_lshrrev_b32 v1, 6, v0")
        e("v_and_b32 v0, 63, v0")
        e("v_readfirstlane_b32 s3, v1")
        e("s_lshr_b32 s4, s2, 5")
        e("s_and_b32 s5, s2, 31")
        e("v_mov_b32 v2, 0")
        e(f"v_mov_b32 v3, {L_SYNC}")
        e("v_mov_b32 v4, 1")
        e("s_cmp_ge_u32 s3, 4")
        e("s_cbranch_scc1 L_stream")
        self.aux()
        L("L_stream")
        self.stream()
        L("L_done")
        e("s_endpgm")
        nv = 256 if self.stamps else 176
        tail = ['.section .rodata,"a"', ".p2align 6", f".amdhsa_kernel {KN}",
                f"  .amdhsa_next_free_vgpr {nv}", "  .amdhsa_next_free_sgpr 96", f"  .amdhsa_accum_offset {nv}",
                "  .amdhsa_group_segment_fixed_size 0", "  .amdhsa_kernarg_size 96", "  .amdhsa_user_sgpr_count 2",
                "  .amdhsa_user_sgpr_kernarg_segment_ptr 1", "  .amdhsa_system_sgpr_workgroup_id_x 1",
                "  .amdhsa_float_denorm_mode_32 3",
                ".end_amdhsa_kernel"]
        return "\n".join(hdr + self.o + tail) + "\n"

    def stamp_setup(self):
        if not self.stamps:
            return
        e = self.e
        self.srd(84, 38, 0x40000000)
        e(f"s_mul_i32 s88, s2, {16*8}"); e(f"s_add_u32 s88, s88, {WS_STAMP:#x}")

    def tile_dma(self, srd, vE, vO, s_org, rowstride, ldsbase, first, count, s_i=None):
        e = self.e
        for k in range(count):
            i = first + k
            v = vO if (i >> 1) & 1 else vE
            e(f"s_mov_b32 m0, {ldsbase}")
            e(f"s_add_u32 {ldsbase}, {ldsbase}, 1024")
            e(f"buffer_load_dwordx4 {v}, s[{srd}:{srd+3}], {s_org} offen nt lds")
            e(f"s_add_u32 {s_org}, {s_org}, {4*rowstride}")

    def dma_voffs(self, vE, vO, rowstride, t0, t1, st):
        e = self.e
        e(f"v_lshrrev_b32 {t0}, 4, v0")
        e(f"v_and_b32 {t1}, 15, v0")
        e(f"v_lshlrev_b32 {vE}, 1, {t0}")
        e(f"v_xor_b32 {vE}, {vE}, {t1}")
        e(f"v_lshlrev_b32 {vE}, 4, {vE}")
        e(f"s_mov_b32 {st}, {rowstride}")
        e(f"v_mul_lo_u32 {t0}, {t0}, {st}")
        e(f"v_add_u32 {vE}, {vE}, {t0}")
        e(f"v_xor_b32 {vO}, 128, {vE}")

    def frag_reads(self, tbase, fr):
        e = self.e
        e(f"v_add_u32 v22, {tbase}, v20")
        e(f"v_add_u32 v23, {tbase}, v21")
        for nbi in range(2):
            for ks in range(4):
                r = fr + (nbi * 4 + ks) * 4
                e(f"ds_read_b64_tr_b16 v[{r}:{r+1}], v{22+nbi} offset:{ks*8192}")
                e(f"ds_read_b64_tr_b16 v[{r+2}:{r+3}], v{22+nbi} offset:{ks*8192+1024}")

    def mfmas(self, fr, bop, d, first_zero):
        e = self.e
        for ks in range(4):
            for nbi in range(2):
                r = fr + (nbi * 4 + ks) * 4
                dd = f"v[{d+nbi*4}:{d+nbi*4+3}]"
                cc = "0" if (first_zero and ks == 0) else dd
                e(f"v_mfma_f32_16x16x32_bf16 {dd}, v[{r}:{r+3}], v[{bop+ks*4}:{bop+ks*4+3}], {cc}")

    def publish(self, d, soff):
        e = self.e
        e("s_nop 7")
        for r in range(4):
            e(f"v_cndmask_b32 v{28+r}, v{d+r}, v{d+4+r}, s[44:45]")
        e(f"buffer_store_dwordx4 v[28:31], v24, s[8:11], {soff} offen sc1")
        e("s_nop 1")

    def poll_loads(self, loads, regs, tmp, scnt):
        e = self.e
        l0, l1 = self.newlab("Lp"), self.newlab("Lpd")
        e(f"s_mov_b32 {scnt}, {SPIN_CAP}")
        self.L(l0)
        for s in loads:
            e(s)
        e("s_waitcnt vmcnt(0)")
        regs = list(regs)
        e(f"v_max3_u32 {tmp}, v{regs[0]}, v{regs[1]}, v{regs[2]}")
        rest = regs[3:]
        while len(rest) >= 2:
            e(f"v_max3_u32 {tmp}, {tmp}, v{rest[0]}, v{rest[1]}"); rest = rest[2:]
        if rest:
            e(f"v_max_u32 {tmp}, {tmp}, v{rest[0]}")
        e(f"v_cmp_eq_u32 vcc, -1, {tmp}")
        e(f"s_sub_u32 {scnt}, {scnt}, 1")
        e(f"s_cbranch_scc1 {l1}")
        e(f"s_cbranch_vccnz {l0}")
        self.L(l1)

    def sum4_halves(self, base, out0, out1):
        e = self.e
        for r in range(4):
            e(f"v_add_f32 v{base+r}, v{base+r}, v{base+4+r}")
            e(f"v_add_f32 v{base+8+r}, v{base+8+r}, v{base+12+r}")
        for r in range(4):
            e(f"v_add_f32 v{base+r}, v{base+r}, v{base+8+r}")
        e("s_nop 1")
        e(f"v_permlane32_swap_b32 v{base}, v{base+2}")
        e(f"v_permlane32_swap_b32 v{base+1}, v{base+3}")
        e("s_nop 1")
        e(f"v_add_f32 {out0}, v{base}, v{base+2}")
        e(f"v_add_f32 {out1}, v{base+1}, v{base+3}")

    def canon(self, v, t):
        e = self.e
        e(f"v_cmp_eq_u32 vcc, -1, {v}")
        e(f"v_mov_b32 {t}, 0x7fc07fc0")
        e("s_nop 0")
        e(f"v_cndmask_b32 {v}, {v}, {t}, vcc")

    def aux(self):
        e, c, L = self.e, self.c, self.L
        c("================ aux waves (0..3) ================")
        e("s_setprio 3")
        c("wave 0 zero-inits sync words and fills the descriptor queue")
        e("s_cmp_lg_u32 s3, 0"); e("s_cbranch_scc1 L_a_noinit")
        e("v_lshlrev_b32 v5, 2, v0")
        e(f"v_add_u32 v5, {L_SYNC}, v5")
        e("v_cmp_gt_u32 vcc, 16, v0")
        e("s_and_saveexec_b64 s[6:7], vcc")
        e("ds_write_b32 v5, v2")
        e("s_mov_b64 exec, s[6:7]")
        c("desc[t] = bh*1MiB + t*ITEM | VALID (t<NITEMS); desc[0] |= SWITCH ; t>=NITEMS: OOB|VALID|END, flush slot 0")
        e("s_lshl_b32 s6, s2, 20")
        e(f"v_mul_u32_u24 v6, {ITEM_BYTES}, v0")
        e(f"v_add_u32 v6, s6, v6")
        e(f"v_or_b32 v6, {D_VALID}, v6")
        e(f"v_mov_b32 v7, {OOB | D_VALID | D_END:#x}")
        e(f"v_cmp_gt_u32 vcc, {NITEMS}, v0")
        e("s_nop 1")
        e("v_cndmask_b32 v6, v7, v6, vcc")
        e(f"ds_write_b32 v5, v6 offset:{L_DESC - L_SYNC}")
        L("L_a_noinit")
        c("lane-derived offsets")
        e("v_lshrrev_b32 v5, 5, v0")
        e("v_and_b32 v6, 31, v0")
        e("v_lshlrev_b32 v6, 4, v6")
        e("v_lshlrev_b32 v7, 11, v5")
        e("v_add_u32 v8, v6, v7")
        e("v_and_b32 v9, 15, v0")
        e("v_lshlrev_b32 v10, 4, v9")
        e("v_add_u32 v10, v10, v7")
        self.dma_voffs("v16", "v17", 8192, "v11", "v12", "s6")
        c("publish offset v24 = (lam&7)*512 + w*128 + (lam>>3)*64 + G*16")
        e("v_and_b32 v11, 7, v0"); e("v_lshlrev_b32 v24, 9, v11")
        e("v_bfe_u32 v11, v0, 3, 1"); e("v_lshlrev_b32 v11, 6, v11"); e("v_add_u32 v24, v24, v11")
        e("v_lshrrev_b32 v11, 4, v0"); e("v_lshlrev_b32 v12, 4, v11"); e("v_add_u32 v24, v24, v12")
        e("s_lshl_b32 s6, s3, 7"); e("v_add_u32 v24, s6, v24")
        for r in range(4): e(f"v_mov_b32 v{28+r}, -1")
        e("s_waitcnt lgkmcnt(0)")
        self.stamp_setup()
        self.srd(8, 38, WS_SIZE)
        self.srd(12, 16, 16384)
        self.srd(40, 22, 8 << 20)
        c("x loads")
        e("s_lshl_b32 s6, s3, 12")
        for k in range(4):
            e(f"buffer_load_dwordx4 v[{32+4*k}:{35+4*k}], v8, s[12:15], s6 offen offset:{k*512}")
        e("s_lshl_b32 s7, s4, 8"); e("s_add_u32 s7, s7, s6")
        e("buffer_load_dwordx4 v[48:51], v10, s[12:15], s7 offen")
        c("wq tile quarter: rows c*128 + w*32 .. , cols h*128")
        e("s_lshl_b32 s6, s4, 7"); e("s_lshl_b32 s7, s3, 5"); e("s_add_u32 s6, s6, s7")
        e("s_lshl_b32 s6, s6, 13"); e("s_lshl_b32 s7, s5, 8"); e("s_add_u32 s6, s6, s7")
        e("s_lshl_b32 s7, s3, 13")
        if L_T0: e(f"s_add_u32 s7, s7, {L_T0}")
        self.tile_dma(40, "v16", "v17", "s6", 8192, "s7", 0, 8)
        c("exchange slot offsets: s46 QP, s47 GP, s48 OP, s49 Z (h*8+b)*256")
        e("s_lshl_b32 s6, s5, 3"); e("s_add_u32 s6, s6, s4")
        e("s_lshl_b32 s46, s6, 12")
        if WS_QP: e(f"s_add_u32 s46, s46, {WS_QP:#x}")
        e("s_lshl_b32 s47, s6, 13"); e(f"s_add_u32 s47, s47, {WS_GP:#x}")
        e("s_add_u32 s50, s47, 4096")
        e("s_lshl_b32 s48, s2, 12"); e(f"s_add_u32 s48, s48, {WS_OP:#x}")
        e("s_lshl_b32 s49, s6, 8")
        c("clean own slots with the sentinel")
        for s in ("s46", "s47", "s50", "s48"):
            e(f"buffer_store_dwordx4 v[28:31], v24, s[8:11], {s} offen sc1")
        e("v_lshlrev_b32 v25, 2, v0")
        e(f"s_add_u32 s51, s49, {WS_ZO:#x}")
        e(f"s_add_u32 s52, s49, {WS_ZH:#x}")
        c("(all four waves write the same Z sentinel; all are complete before the first aux barrier)")
        e("buffer_store_dword v28, v25, s[8:11], s51 offen sc1")
        e("buffer_store_dword v28, v25, s[8:11], s52 offen sc1")
        e("s_waitcnt lgkmcnt(0)")
        e("s_barrier")
        c("tr-read lane addresses v20,v21 (tile relative): (8G+r)*256 + ((nb^g)*32) + cc*8")
        e("v_lshrrev_b32 v11, 4, v0")
        e("v_bfe_u32 v12, v0, 2, 2")
        e("v_and_b32 v13, 3, v0")
        e("v_lshlrev_b32 v14, 3, v11"); e("v_add_u32 v14, v14, v12"); e("v_lshlrev_b32 v14, 8, v14")
        e("v_lshl_add_u32 v14, v13, 3, v14")
        e("v_and_b32 v15, 1, v11"); e("v_lshl_or_b32 v15, v15, 2, v12")
        e("s_lshl_b32 s6, s3, 1")
        e("v_xor_b32 v20, s6, v15"); e("v_xor_b32 v21, 1, v20")
        e("v_lshl_add_u32 v20, v20, 5, v14"); e("v_lshl_add_u32 v21, v21, 5, v14")
        e("v_cmp_lt_u32 s[44:45], 7, v9")
        c("B-operand LDS address v26 = XN + (lam&7)*272 + G*16 ; global B-operand offset v27 = (lam&7)*256 + G*16")
        e("v_and_b32 v12, 7, v0")
        e(f"v_mul_u32_u24 v26, 272, v12"); e("v_lshl_add_u32 v26, v11, 4, v26"); e(f"v_add_u32 v26, {L_XN}, v26")
        e("v_lshlrev_b32 v27, 8, v12"); e("v_lshl_add_u32 v27, v11, 4, v27")
        c("gather offsets: v58 = half*4096 + j*16 (QP), v59 = half*8192 + j*16 (GP)")
        e("v_lshl_add_u32 v58, v5, 12, v6"); e("v_lshl_add_u32 v59, v5, 13, v6")
        e("v_lshrrev_b32 v60, 1, v6"); e("v_lshl_add_u32 v60, v5, 2, v60")
        c("output element of this lane: n = 4j + 2*bit5 + bit4 within 32-col group; b'=h>>2, col = c*128+(h&3)*32+n")
        e("v_and_b32 v56, 7, v0"); e("v_lshlrev_b32 v56, 2, v56")
        e("v_lshl_add_u32 v56, v5, 1, v56")
        e("v_bfe_u32 v57, v0, 4, 1"); e("v_add_u32 v56, v56, v57")
        e("v_lshlrev_b32 v62, 1, v56")
        e("s_lshr_b32 s6, s5, 2"); e("s_lshl_b32 s6, s6, 11")
        e("s_lshl_b32 s7, s4, 8"); e("s_add_u32 s6, s6, s7")
        e("s_and_b32 s7, s5, 3"); e("s_lshl_b32 s7, s7, 6"); e("s_add_u32 s6, s6, s7")
        e("v_add_u32 v62, s6, v62")
        c("---- layernorm: lanes 0-31 row 2w, lanes 32-63 row 2w+1 ----")
        e("s_mov_b32 s6, 0x3f803f80")
        e("v_mov_b32 v52, 0"); e("v_mov_b32 v53, 0")
        e("s_waitcnt vmcnt(14)")
        for k in range(16):
            e(f"v_dot2c_f32_bf16 v{52+(k&1)}, s6, v{32+k}")
        e("s_nop 2")
        e("v_add_f32 v52, v52, v53")
        def red32(v, t):
            for sh in (8, 4, 2, 1):
                e("s_nop 1")
                e(f"v_add_f32_dpp {v}, {v}, {v} row_ror:{sh} row_mask:0xf bank_mask:0xf")
            e(f"v_mov_b32 {t}, {v}")
            e("s_nop 1")
            e(f"v_permlane16_swap_b32 {v}, {t}")
            e("s_nop 1")
            e(f"v_add_f32 {v}, {v}, {t}")
        red32("v52", "v53")
        e(f"v_mul_f32 v52, {f2u(1.0/1024):#x}, v52")
        e("v_mov_b32 v54, 0"); e("v_mov_b32 v55, 0")
        for k in range(16):
            e(f"v_lshlrev_b32 v56, 16, v{32+k}")
            e(f"v_and_b32 v57, 0xffff0000, v{32+k}")
            e("v_sub_f32 v56, v56, v52"); e("v_sub_f32 v57, v57, v52")
            e("v_fmac_f32 v54, v56, v56"); e("v_fmac_f32 v55, v57, v57")
        e("v_add_f32 v54, v54, v55")
        red32("v54", "v55")
        e(f"v_mul_f32 v54, {f2u(1.0/1024):#x}, v54")
        self.bf16r("v52", "v52")
        self.bf16r("v54", "v54")
        e(f"v_add_f32 v54, {f2u(1e-5):#x}, v54")
        self.bf16r("v54", "v54")
        e("v_sqrt_f32 v54, v54")
        e("s_nop 0")
        self.bf16r("v54", "v54")
        e("v_rcp_f32 v54, v54")
        for k in range(4):
            e(f"v_lshlrev_b32 v56, 16, v{48+k}")
            e(f"v_and_b32 v57, 0xffff0000, v{48+k}")
            e("v_sub_f32 v56, v56, v52"); e("v_sub_f32 v57, v57, v52")
            self.bf16r("v56", "v56"); self.bf16r("v57", "v57")
            e("v_mul_f32 v56, v56, v54"); e("v_mul_f32 v57, v57, v54")
            e(f"v_cvt_pk_bf16_f32 v{48+k}, v56, v57")
        c("write xn slice: XN + (2w+half)*272 + lam*16")
        e("s_mul_i32 s6, s3, 544")
        e("v_mul_u32_u24 v56, 272, v5"); e("v_lshl_add_u32 v56, v9, 4, v56"); e("v_add_u32 v56, s6, v56")
        e(f"v_add_u32 v56, {L_XN}, v56")
        e("ds_write_b128 v56, v[48:51]")
        e("s_waitcnt vmcnt(0) lgkmcnt(0)")
        self.lds_add1("v3", S_AUXBAR, "v4", "s[6:7]")
        self.lds_wait_ge("v3", S_AUXBAR, 4, "v56", "s6", sleep=0)
        if self.stamps:
            e("s_cmp_lg_u32 s3, 0"); e("s_cbranch_scc1 L_st1"); self.stamp(1); L("L_st1")
        c("wave 0: signal 'cleaned' in d_debug[2h]")
        self.srd(56, 36, 256)
        e("s_cmp_lg_u32 s3, 0"); e("s_cbranch_scc1 L_a_nosig")
        e("s_lshl_b32 s6, s5, 3")
        e("v_mov_b32 v56, s6")
        e("s_mov_b64 exec, 1")
        e("buffer_atomic_add v4, v56, s[56:59], 0 offen sc1")
        e("s_mov_b64 exec, -1")
        L("L_a_nosig")
        c("---- q partial GEMM ----")
        for ks in range(4):
            e(f"ds_read_b128 v[{64+4*ks}:{67+4*ks}], v26 offset:{ks*64}")
        self.frag_reads(L_T0, 96)
        e("s_waitcnt lgkmcnt(0)")
        self.mfmas(96, 64, 80, True)
        self.publish(80, "s46")
        e("s_cmp_eq_u32 s3, 0"); e("s_cbranch_scc1 L_a0_q")
        c("---- waves 1..3: FFN tile DMA (gate, up, down) ----")
        e("s_cmp_ge_u32 s5, 28"); e("s_cbranch_scc1 L_a_bar2")
        e("s_cmp_eq_u32 s3, 3"); e("s_cbranch_scc1 L_a3_dma")
        self.dma_voffs("v16", "v17", 7168, "v11", "v12", "s6")
        e("s_cmp_eq_u32 s3, 1")
        e("s_cselect_b32 s40, s28, s30"); e("s_cselect_b32 s41, s29, s31")
        assert L_T1 == 1 << 15 and L_T2 == 2 << 15
        e("s_lshl_b32 s7, s3, 15")
        e(f"s_mov_b32 s42, {7 << 20:#x}"); e("s_mov_b32 s43, 0x20000")
        e(f"s_mul_i32 s6, s4, {128*7168}"); e("s_lshl_b32 s53, s5, 8"); e("s_add_u32 s6, s6, s53")
        self.tile_dma(40, "v16", "v17", "s6", 7168, "s7", 0, 32)
        e("s_branch L_a_bar2")
        L("L_a3_dma")
        self.dma_voffs("v16", "v17", 2048, "v11", "v12", "s6")
        self.srd(40, 32, 7 << 20)
        e(f"s_mov_b32 s7, {L_T3}")
        e("s_lshl_b32 s6, s5, 18"); e("s_lshl_b32 s53, s4, 8"); e("s_add_u32 s6, s6, s53")
        self.tile_dma(40, "v16", "v17", "s6", 2048, "s7", 0, 32)
        e("s_branch L_a_bar2")
        L("L_a0_q")
        c("---- wave 0: wait until the group's slots are clean, gather q ----")
        e("s_lshl_b32 s6, s5, 3")
        e("v_mov_b32 v56, s6")
        e(f"s_mov_b32 s53, {SPIN_CAP}")
        L("L_a0_pollg")
        e("buffer_load_dword v57, v56, s[56:59], 0 offen sc1")
        e("s_waitcnt vmcnt(0)")
        e("v_readfirstlane_b32 s7, v57")
        e("s_sub_u32 s53, s53, 1"); e("s_cbranch_scc1 L_a0_pollgd")
        e("s_cmp_lt_u32 s7, 8"); e("s_cbranch_scc1 L_a0_pollg")
        L("L_a0_pollgd")
        self.stamp(2)
        e("s_lshl_b32 s60, s5, 15"); e("s_lshl_b32 s6, s4, 9"); e("s_add_u32 s60, s60, s6")
        if WS_QP: e(f"s_add_u32 s60, s60, {WS_QP:#x}")
        for k in range(1, 4): e(f"s_add_u32 s{60+k}, s60, {k*8192}")
        self.poll_loads([f"buffer_load_dwordx4 v[{128+4*k}:{131+4*k}], v58, s[8:11], s{60+k} offen sc1" for k in range(4)],
                        range(128, 144), "v57", "s53")
        self.sum4_halves(128, "v144", "v145")
        e("v_cvt_pk_bf16_f32 v144, v144, v145")
        c("LDS q[0] at 8j+4half")
        e(f"v_add_u32 v61, {L_Q}, v60")
        e("ds_write_b32 v61, v144")
        e("s_waitcnt lgkmcnt(0)")
        self.lds_add1("v3", S_QRDY, "v4", "s[6:7]")
        self.stamp(3)
        L("L_a_bar2")
        c("accumulators for the output partial: v[88:95]")
        for r in range(8): e(f"v_mov_b32 v{88+r}, 0")
        e("s_cmp_ge_u32 s5, 28"); e("s_cbranch_scc1 L_a_ffn_done")
        e("s_waitcnt vmcnt(0)")
        self.lds_add1("v3", S_AUXBAR, "v4", "s[6:7]")
        self.lds_wait_ge("v3", S_AUXBAR, 8, "v56", "s6", sleep=2)
        c("---- gate / up partial GEMMs ----")
        self.frag_reads(L_T1, 96)
        e("s_waitcnt lgkmcnt(0)")
        self.mfmas(96, 64, 80, True)
        self.publish(80, "s47")
        self.frag_reads(L_T2, 96)
        e("s_waitcnt lgkmcnt(0)")
        self.mfmas(96, 64, 80, True)
        self.publish(80, "s50")
        self.frag_reads(L_T3, 96)
        e("s_cmp_lg_u32 s3, 0"); e("s_cbranch_scc1 L_a_zh")
        c("wave 0: gather g,u -> hh -> publish ZH")
        e("s_lshl_b32 s60, s5, 16"); e("s_lshl_b32 s6, s4, 9"); e("s_add_u32 s60, s60, s6"); e(f"s_add_u32 s60, s60, {WS_GP:#x}")
        for k in range(1, 4): e(f"s_add_u32 s{60+k}, s60, {k*16384}")
        for k in range(4): e(f"s_add_u32 s{64+k}, s{60+k}, 4096")
        self.poll_loads([f"buffer_load_dwordx4 v[{128+4*k}:{131+4*k}], v59, s[8:11], s{60+k} offen sc1" for k in range(8)],
                        range(128, 160), "v57", "s53")
        self.sum4_halves(128, "v160", "v161")
        self.sum4_halves(144, "v162", "v163")
        for r in range(4): self.bf16r(f"v{160+r}", f"v{160+r}")
        e("v_mul_f32 v160, v160, v162"); e("v_mul_f32 v161, v161, v163")
        e("v_cvt_pk_bf16_f32 v160, v160, v161")
        self.canon("v160", "v161")
        e("buffer_store_dword v160, v60, s[8:11], s52 offen sc1")
        L("L_a_zh")
        c("all: gather hh of the group as B operands, down GEMM")
        e(f"s_lshl_b32 s60, s5, 11"); e(f"s_add_u32 s60, s60, {WS_ZH:#x}")
        self.poll_loads([f"buffer_load_dwordx4 v[{64+4*k}:{67+4*k}], v27, s[8:11], s60 offen offset:{k*64} sc1" for k in range(4)],
                        range(64, 80), "v57", "s53")
        e("s_waitcnt lgkmcnt(0)")
        self.mfmas(96, 64, 88, False)
        L("L_a_ffn_done")
        if self.stamps:
            e("s_cmp_lg_u32 s3, 0"); e("s_cbranch_scc1 L_st4"); self.stamp(4); L("L_st4")
        e("s_cmp_lg_u32 s3, 0"); e("s_cbranch_scc1 L_a_late123")
        c("---- wave 0: check that every workgroup has cleaned its slots; residual x ----")
        e("v_lshlrev_b32 v56, 3, v0")
        e(f"s_mov_b32 s53, {SPIN_CAP}")
        e("s_mov_b32 exec_lo, -1"); e("s_mov_b32 exec_hi, 0")
        L("L_a0_polla")
        e("buffer_load_dword v57, v56, s[56:59], 0 offen sc1")
        e("s_waitcnt vmcnt(0)")
        e("v_cmp_gt_u32 vcc, 8, v57")
        e("s_sub_u32 s53, s53, 1"); e("s_cbranch_scc1 L_a0_pollad")
        e("s_cbranch_vccnz L_a0_polla")
        L("L_a0_pollad")
        e("s_mov_b64 exec, -1")
        e("buffer_load_ushort v63, v62, s[12:15], 0 offen")
        c("---- wave 0: merge the stream waves' partials ----")
        self.lds_wait_ge("v3", S_PROG, NITEMS - 3, "v56", "s6", sleep=16)
        self.lds_wait_ge("v3", S_PCNT, 4, "v56", "s6", sleep=0)
        self.stamp(5)
        e("v_lshlrev_b32 v56, 3, v0"); e(f"v_add_u32 v56, {L_PO}, v56")
        e(f"v_mov_b32 v57, {L_PML}")
        e("ds_read_b128 v[128:131], v57"); e("ds_read_b128 v[132:135], v57 offset:16")
        for w in range(4): e(f"ds_read_b64 v[{136+2*w}:{137+2*w}], v56 offset:{w*512}")
        e("s_waitcnt lgkmcnt(4)")
        e("v_max3_f32 v144, v128, v130, v132"); e("v_max_f32 v144, v144, v134")
        for w in range(4): e(f"v_sub_f32 v{128+2*w}, v{128+2*w}, v144")
        for w in range(4): e(f"v_exp_f32 v{128+2*w}, v{128+2*w}")
        e("s_nop 0")
        e("v_mul_f32 v145, v128, v129")
        for w in range(1, 4): e(f"v_fmac_f32 v145, v{128+2*w}, v{129+2*w}")
        e("v_rcp_f32 v145, v145")
        e("s_waitcnt lgkmcnt(0)")
        e("v_mul_f32 v146, v128, v136"); e("v_mul_f32 v147, v128, v137")
        for w in range(1, 4):
            e(f"v_fmac_f32 v146, v{128+2*w}, v{136+2*w}"); e(f"v_fmac_f32 v147, v{128+2*w}, v{137+2*w}")
        e("v_mul_f32 v146, v146, v145"); e("v_mul_f32 v147, v147, v145")
        e("v_cvt_pk_bf16_f32 v146, v146, v147")
        self.canon("v146", "v147")
        e("buffer_store_dword v146, v25, s[8:11], s51 offen sc1")
        e("s_branch L_a_wo_wait")
        L("L_a_late123")
        e("s_cmp_eq_u32 s3, 1"); e("s_cbranch_scc1 L_a_wo_wait1")
        c("---- waves 2,3: wo tile DMA (half each) once the stream is near its end ----")
        self.dma_voffs("v16", "v17", 2048, "v11", "v12", "s6")
        self.srd(40, 24, 8 << 20)
        e("s_sub_u32 s53, s3, 2")
        e("s_lshl_b32 s7, s53, 14")
        if L_T0: e(f"s_add_u32 s7, s7, {L_T0}")
        e("s_lshl_b32 s54, s5, 18"); e("s_lshl_b32 s55, s4, 8"); e("s_add_u32 s54, s54, s55")
        e("s_lshl_b32 s55, s53, 17"); e("s_add_u32 s54, s54, s55")
        self.lds_wait_ge("v3", S_PROG, self.wo_trig, "v56", "s6", sleep=8)
        self.tile_dma(40, "v16", "v17", "s54", 2048, "s7", 0, 16)
        e("s_waitcnt vmcnt(0)")
        self.lds_add1("v3", S_WO, "v4", "s[6:7]")
        e("s_branch L_a_wo_wait")
        L("L_a_wo_wait1")
        self.lds_wait_ge("v3", S_PROG, self.wo_trig, "v56", "s6", sleep=16)
        L("L_a_wo_wait")
        self.lds_wait_ge("v3", S_WO, 2, "v56", "s6", sleep=1)
        self.frag_reads(L_T0, 96)
        c("waves 1..3 start polling only when the local stream is finished")
        self.lds_wait_ge("v3", S_PCNT, 4, "v56", "s6", sleep=1)
        e(f"s_lshl_b32 s60, s5, 11"); e(f"s_add_u32 s60, s60, {WS_ZO:#x}")
        self.poll_loads([f"buffer_load_dwordx4 v[{64+4*k}:{67+4*k}], v27, s[8:11], s60 offen offset:{k*64} sc1" for k in range(4)],
                        range(64, 80), "v57", "s53")
        e("s_waitcnt lgkmcnt(0)")
        self.mfmas(96, 64, 88, False)
        self.publish(88, "s48")
        e("s_cmp_lg_u32 s3, 0"); e("s_cbranch_scc1 L_done")
        self.stamp(6)
        c("---- wave 0: final reduction over the 32 heads' partials ----")
        e("v_lshrrev_b32 v56, 3, v0"); e("v_lshlrev_b32 v56, 12, v56")
        e("v_and_b32 v57, 7, v0"); e("v_lshl_add_u32 v58, v57, 4, v56")
        e("s_lshl_b32 s60, s4, 17"); e("s_lshl_b32 s6, s5, 7"); e("s_add_u32 s60, s60, s6")
        e(f"s_add_u32 s60, s60, {WS_OP:#x}")
        for k in range(1, 4): e(f"s_add_u32 s{60+k}, s60, {k*32768}")
        self.poll_loads([f"buffer_load_dwordx4 v[{128+4*k}:{131+4*k}], v58, s[8:11], s{60+k} offen sc1" for k in range(4)],
                        range(128, 144), "v57", "s53")
        self.sum4_halves(128, "v144", "v145")
        e("s_nop 1")
        e("v_permlane16_swap_b32 v144, v145")
        e("s_nop 1")
        e("v_add_f32 v144, v144, v145")
        e("v_lshlrev_b32 v63, 16, v63")
        e("s_nop 0")
        e("v_add_f32_dpp v144, v144, v144 row_ror:8 row_mask:0xf bank_mask:0xf")
        e("v_add_f32 v144, v144, v63")
        e("v_cvt_pk_bf16_f32 v144, v144, v144")
        self.srd(40, 34, 16384)
        e("s_mov_b32 exec_lo, 0x00ff00ff"); e("s_mov_b32 exec_hi, 0x00ff00ff")
        e("buffer_store_short v144, v62, s[40:43], 0 offen")
        e("s_mov_b64 exec, -1")
        self.stamp(7)
        e("s_branch L_done")

    def stream(self):
        e, c, L = self.e, self.c, self.L
        RING = 40
        SP = 24
        ACC = 16
        Q = 12
        vM, vL, vS, vT, vPl, vPh, vA = "v32", "v33", "v34", "v35", "v36", "v37", "v38"
        vLane, vOff, vD = "v5", "v6", "v7"
        vQa, vPo = "v8", "v9"
        c("================ stream waves (4..7) ================")
        e("s_sub_u32 s3, s3, 4")
        e(f"v_lshlrev_b32 {vLane}, 4, v0")
        e("s_lshl_b32 s6, s3, 12")
        e(f"v_add_u32 {vLane}, s6, {vLane}")
        e("s_mov_b32 s44, 16384")
        e("s_lshl_b32 s6, s2, 20")
        e(f"v_add_u32 {vOff}, s6, {vLane}")
        e("s_waitcnt lgkmcnt(0)")
        self.stamp_setup()
        if self.stamps:
            e("s_cmp_lg_u32 s3, 0"); e("s_cbranch_scc1 L_st0"); self.stamp(0); e("s_waitcnt vmcnt(0)"); L("L_st0")
        self.srd(8, 18, 1 << 28)
        self.srd(12, 20, 1 << 28)
        def slot(buf, kv, i):
            r = RING + buf * 64 + kv * 32 + i * 4
            return r
        def issue(buf, kv, i):
            r = slot(buf, kv, i)
            srd = "s[8:11]" if kv == 0 else "s[12:15]"
            so = "0" if i < 4 else "s44"
            e(f"buffer_load_dwordx4 v[{r}:{r+3}], {vOff}, {srd}, {so} offen offset:{(i&3)*1024} nt")
        for buf in range(2):
            for kv in range(2):
                for i in range(NK):
                    issue(buf, kv, i)
                    if (buf, kv, i) == (0, 0, 3): e("s_barrier")
            if buf == 0:
                e(f"v_add_u32 {vOff}, {ITEM_BYTES}, {vOff}")
        c("constants")
        e("v_and_b32 v10, 15, v0")
        e(f"v_lshlrev_b32 {vQa}, 4, v10"); e(f"v_add_u32 {vQa}, {L_Q}, {vQa}")
        e(f"v_lshlrev_b32 {vPo}, 5, v10"); e("v_lshrrev_b32 v11, 4, v0"); e(f"v_lshl_add_u32 {vPo}, v11, 3, {vPo}")
        e("s_lshl_b32 s6, s3, 9"); e(f"s_add_u32 s6, s6, {L_PO}"); e(f"v_add_u32 {vPo}, s6, {vPo}")
        e("v_and_b32 v10, 2, v0"); e("v_cmp_ne_u32 s[46:47], 0, v10")
        e(f"s_mov_b32 s48, {f2u(128 ** -0.5):#x}")
        e(f"s_mov_b32 s49, {f2u(1.4426950408889634):#x}")
        c("descriptors: s50 = current item, s51 = next, s52 = item being issued; s53 = item index t")
        e(f"s_mov_b32 s50, {D_VALID}"); e(f"s_mov_b32 s51, {D_VALID}")
        e("s_mov_b32 s53, 0")
        e(f"v_mov_b32 v39, {L_DESC + 8}")
        e(f"ds_read_b32 {vD}, v39")
        c("wait for q")
        self.lds_wait_ge("v3", S_QRDY, 1, "v10", "s6", sleep=2)
        e(f"ds_read_b128 v[{Q}:{Q+3}], {vQa}")
        for r in range(8): e(f"v_mov_b32 v{ACC+r}, 0")
        e(f"v_mov_b32 {vM}, 0xff800000"); e(f"v_mov_b32 {vL}, 0")
        e("s_waitcnt lgkmcnt(0)")
        L("L_s_loop")
        for buf in range(2):
            c(f"---- item in buffer {buf} ----")
            e(f"s_and_b32 s6, s50, {D_END}"); e("s_cbranch_scc1 L_s_end")
            c("descriptor of item t+2")
            lr, ld = self.newlab("Lsd"), self.newlab("Lsdd")
            L(lr)
            e("s_waitcnt lgkmcnt(0)")
            e(f"v_readfirstlane_b32 s52, {vD}")
            e("s_nop 0")
            e(f"s_and_b32 s6, s52, {D_VALID}"); e(f"s_cbranch_scc1 {ld}")
            e("s_sleep 1")
            e(f"ds_read_b32 {vD}, v39")
            e(f"s_branch {lr}")
            L(ld)
            e("s_and_b32 s6, s52, 0xffff8000")
            e(f"v_add_u32 {vOff}, s6, {vLane}")
            e("v_add_u32 v39, 4, v39")
            e(f"ds_read_b32 {vD}, v39")
            c("progress")
            e("v_mov_b32 v10, s53")
            e(f"ds_max_u32 v3, v10 offset:{S_PROG}")
            e("s_add_u32 s53, s53, 1")
            c("K phase")
            for i in range(NK):
                r = slot(buf, 0, i)
                e("s_waitcnt vmcnt(31)")
                e(f"v_dot2_f32_bf16 v{SP+i}, v{r}, v{Q}, 0")
                for j in range(1, 4):
                    e(f"v_dot2_f32_bf16 v{SP+i}, v{r+j}, v{Q+j}, v{SP+i}")
                issue(buf, 0, i)
            c("reduce-scatter over the 16 lanes of a row")
            e("s_nop 1")
            for i in range(4):
                e(f"v_add_f32_dpp v{SP+i}, v{SP+i}, v{SP+i} row_ror:8 row_mask:0xf bank_mask:0x3")
            for i in range(4):
                e(f"v_add_f32_dpp v{SP+i}, v{SP+4+i}, v{SP+4+i} row_ror:8 row_mask:0xf bank_mask:0xc")
            for i in range(2):
                e(f"v_add_f32_dpp v{SP+i}, v{SP+i}, v{SP+i} row_shl:4 row_mask:0xf bank_mask:0x5")
            for i in range(2):
                e(f"v_add_f32_dpp v{SP+i}, v{SP+2+i}, v{SP+2+i} row_shr:4 row_mask:0xf bank_mask:0xa")
            e("s_nop 0")
            e(f"v_add_f32_dpp v{SP}, v{SP}, v{SP} quad_perm:[2,3,0,1] row_mask:0xf bank_mask:0xf")
            e(f"v_add_f32_dpp v{SP+1}, v{SP+1}, v{SP+1} quad_perm:[2,3,0,1] row_mask:0xf bank_mask:0xf")
            e(f"v_cndmask_b32 {vS}, v{SP}, v{SP+1}, s[46:47]")
            e("s_nop 1")
            e(f"v_add_f32_dpp {vS}, {vS}, {vS} quad_perm:[1,0,3,2] row_mask:0xf bank_mask:0xf")
            c("lane (g,lam) now holds the raw score of load i = lam>>1, row g")
            self.bf16r(vS, vS)
            e(f"v_mul_f32 {vS}, s48, {vS}")
            self.bf16r(vS, vS)
            e(f"v_mul_f32 {vS}, s49, {vS}")
            e("s_nop 1")
            e(f"v_max_f32_dpp {vT}, {vS}, {vS} row_ror:8 row_mask:0xf bank_mask:0xf")
            e("s_nop 1")
            e(f"v_max_f32_dpp {vT}, {vT}, {vT} row_ror:4 row_mask:0xf bank_mask:0xf")
            e("s_nop 1")
            e(f"v_max_f32_dpp {vT}, {vT}, {vT} row_ror:2 row_mask:0xf bank_mask:0xf")
            e(f"v_mov_b32 {vA}, {vT}")
            e("s_nop 1")
            e(f"v_permlane16_swap_b32 {vT}, {vA}")
            e("s_nop 1")
            e(f"v_max_f32 {vT}, {vT}, {vA}")
            e(f"v_mov_b32 {vA}, {vT}")
            e("s_nop 1")
            e(f"v_permlane32_swap_b32 {vT}, {vA}")
            e("s_nop 1")
            e(f"v_max3_f32 {vT}, {vT}, {vA}, {vM}")
            e(f"v_sub_f32 {vA}, {vM}, {vT}")
            e(f"v_sub_f32 {vS}, {vS}, {vT}")
            e(f"v_exp_f32 {vA}, {vA}")
            e(f"v_exp_f32 {vS}, {vS}")
            e(f"v_mov_b32 {vM}, {vT}")
            e(f"v_cvt_pk_bf16_f32 {vPl}, {vS}, 0")
            e(f"v_cvt_pk_bf16_f32 {vPh}, 0, {vS}")
            for r in range(8): e(f"v_mul_f32 v{ACC+r}, v{ACC+r}, {vA}")
            e(f"v_fma_f32 {vL}, {vL}, {vA}, {vPh}")
            c("V phase")
            for i in range(NK):
                r = slot(buf, 1, i)
                e("s_waitcnt vmcnt(31)")
                for j in range(4):
                    e(f"v_dot2c_f32_bf16_dpp v{ACC+2*j}, {vPl}, v{r+j} row_newbcast:{2*i} row_mask:0xf bank_mask:0xf")
                    e(f"v_dot2c_f32_bf16_dpp v{ACC+2*j+1}, {vPh}, v{r+j} row_newbcast:{2*i} row_mask:0xf bank_mask:0xf")
                issue(buf, 1, i)
            e("s_mov_b32 s50, s51"); e("s_mov_b32 s51, s52")
        e("s_branch L_s_loop")
        L("L_s_end")
        c("flush: reduce rows, write partial o and (m,l)")
        e("s_nop 2")
        for j in range(4):
            e(f"v_permlane32_swap_b32 v{ACC+j}, v{ACC+4+j}")
        e(f"v_add_f32_dpp {vL}, {vL}, {vL} row_ror:8 row_mask:0xf bank_mask:0xf")
        for j in range(4):
            e(f"v_add_f32 v{ACC+j}, v{ACC+j}, v{ACC+4+j}")
        e(f"v_add_f32_dpp {vL}, {vL}, {vL} row_ror:4 row_mask:0xf bank_mask:0xf")
        e("s_nop 0")
        e(f"v_permlane16_swap_b32 v{ACC}, v{ACC+2}")
        e(f"v_permlane16_swap_b32 v{ACC+1}, v{ACC+3}")
        e(f"v_add_f32_dpp {vL}, {vL}, {vL} row_ror:2 row_mask:0xf bank_mask:0xf")
        e(f"v_add_f32 v{ACC}, v{ACC}, v{ACC+2}")
        e(f"v_add_f32 v{ACC+1}, v{ACC+1}, v{ACC+3}")
        e(f"v_mov_b32 {vA}, {vL}")
        e(f"ds_write_b64 {vPo}, v[{ACC}:{ACC+1}]")
        e("s_nop 0")
        e(f"v_permlane16_swap_b32 {vL}, {vA}")
        e("s_nop 1")
        e(f"v_add_f32 {vL}, {vL}, {vA}")
        e(f"v_mov_b32 {vA}, {vL}")
        e("s_nop 1")
        e(f"v_permlane32_swap_b32 {vL}, {vA}")
        e("s_nop 1")
        e(f"v_add_f32 {vL}, {vL}, {vA}")
        e("s_lshl_b32 s6, s3, 3"); e(f"s_add_u32 s6, s6, {L_PML}")
        e("v_mov_b32 v10, s6")
        e("s_mov_b64 exec, 1")
        e(f"ds_write_b64 v10, v[32:33]")
        e(f"ds_add_u32 v3, v4 offset:{S_PCNT}")
        e("s_mov_b64 exec, -1")
        e("s_waitcnt lgkmcnt(0)")

if __name__ == "__main__":
    import argparse
    ap = argparse.ArgumentParser()
    ap.add_argument("-o", default="k.s")
    ap.add_argument("--stamps", action="store_true")
    ap.add_argument("--wo_trig", type=int, default=NITEMS - 2)
    a = ap.parse_args()
    open(a.o, "w").write(Gen(stamps=a.stamps, wo_trig=a.wo_trig).build())
```

```python
import sys, struct

KN = "parallel_sum__mha_block_cached__glu_gated_bilinear__decode_kernel"

def f2u(f):
    return struct.unpack("<I", struct.pack("<f", f))[0]

WS_QP = 0x000000
WS_GP = 0x100000
WS_ZO = 0x300000
WS_ZH = 0x310000
WS_OP = 0x400000
WS_EPOCH = 0x320000
WS_PR = 0x330000
WS_SIZE = 0x800000
WS_STAMP = 0x20000000

L_T0, L_T1, L_T2, L_T3 = 0, 32768, 65536, 98304
L_XN = 131072
L_Q = L_XN + 8 * 272
L_PO = L_Q + 8 * 256
NSLOT = 2
L_PML = L_PO + NSLOT * 4 * 512
L_SYNC = L_PML + NSLOT * 4 * 8
S_AUXBAR, S_QRDY, S_PROG, S_PFD, S_PCNT, S_HOLD = 0, 4, 8, 12, 16, 24
L_DESC = L_SYNC + 64
L_TS = L_DESC + 256
L_END = L_TS + 512
LDS_BYTES = (L_END + 255) // 256 * 256

NK = 8
ITEM_BYTES = NK * 4 * 1024
NITEMS = (1 << 20) // ITEM_BYTES
D_VALID, D_SWITCH, D_END = 1, 2, 4
OOB = 0x20000000
SPIN_CAP = 20000

class Gen:
    def __init__(self, a):
        self.o = []
        self.lab = 0
        self.__dict__.update(vars(a))
        self.o = []
    def e(self, s):
        self.o.append("    " + s)
    def c(self, s):
        self.o.append("    ; " + s)
    def L(self, name):
        self.o.append(name + ":")
    def newlab(self, p="L"):
        self.lab += 1
        return f"{p}_{self.lab}"
    def nop(self, n):
        if n > 0:
            self.e(f"s_nop {n-1}")

    def srd(self, d, ptr, nbytes):
        e = self.e
        e(f"s_mov_b32 s{d}, s{ptr}"); e(f"s_mov_b32 s{d+1}, s{ptr+1}")
        e(f"s_mov_b32 s{d+2}, {nbytes:#x}"); e(f"s_mov_b32 s{d+3}, 0x20000")

    def lds_wait_ge(self, vaddr, off, target, vt, st, sleep=1):
        e = self.e
        l0, l1 = self.newlab("Lw"), self.newlab("Lwd")
        self.L(l0)
        e(f"ds_read_b32 {vt}, {vaddr} offset:{off}")
        e("s_waitcnt lgkmcnt(0)")
        e(f"v_readfirstlane_b32 {st}, {vt}")
        e("s_nop 0")
        e(f"s_cmp_ge_u32 {st}, {target}")
        e(f"s_cbranch_scc1 {l1}")
        e(f"s_sleep {sleep}")
        e(f"s_branch {l0}")
        self.L(l1)

    def lds_add1(self, vaddr, off, vone, ssave):
        e = self.e
        e(f"s_mov_b64 {ssave}, exec")
        e("s_mov_b64 exec, 1")
        e(f"ds_add_u32 {vaddr}, {vone} offset:{off}")
        e(f"s_mov_b64 exec, {ssave}")

    def stamp(self, idx):
        if not self.stamps:
            return
        e = self.e
        e("s_memrealtime s[90:91]")
        e("s_waitcnt lgkmcnt(0)")
        e("v_mov_b32 v250, s90"); e("v_mov_b32 v251, s91")
        e(f"v_mov_b32 v252, s88")
        e("s_mov_b64 s[92:93], exec"); e("s_mov_b64 exec, 1")
        e(f"buffer_store_dwordx2 v[250:251], v252, s[84:87], 0 offen offset:{idx*8}")
        e("s_mov_b64 exec, s[92:93]")

    def bf16r(self, d, s):
        self.e(f"v_cvt_pk_bf16_f32 {d}, 0, {s}")

    def build(self):
        e, c, L = self.e, self.c, self.L
        hdr = []
        hdr.append(f"; @launch grid=(256,1,1) block=(512,1,1) lds={LDS_BYTES}")
        hdr.append('.amdgcn_target "amdgcn-amd-amdhsa--gfx950"')
        hdr += [".text", f".globl {KN}", ".p2align 8", f".type {KN},@function", f"{KN}:"]
        e("s_cmp_ge_u32 s2, 256"); e("s_cbranch_scc1 L_done")
        c("kernarg: s16 x, s18 K, s20 V, s22 wq, s24 wo, s26 Bx, s28 wg, s30 wu, s32 wd, s34 out, s36 dbg, s38 ws")
        e("s_load_dwordx16 s[16:31], s[0:1], 0")
        e("s_load_dwordx8 s[32:39], s[0:1], 64")
        e("v_lshrrev_b32 v1, 6, v0")
        e("v_and_b32 v0, 63, v0")
        e("v_readfirstlane_b32 s3, v1")
        e("s_lshr_b32 s4, s2, 5")
        e("s_and_b32 s5, s2, 31")
        e("v_mov_b32 v2, 0")
        e(f"v_mov_b32 v3, {L_SYNC}")
        e("v_mov_b32 v4, 1")
        e("s_cmp_ge_u32 s3, 4")
        e("s_cbranch_scc1 L_stream")
        self.aux()
        L("L_stream")
        self.stream()
        L("L_done")
        e("s_endpgm")
        nv = 256 if self.stamps else 176
        tail = ['.section .rodata,"a"', ".p2align 6", f".amdhsa_kernel {KN}",
                f"  .amdhsa_next_free_vgpr {nv}", "  .amdhsa_next_free_sgpr 96", f"  .amdhsa_accum_offset {nv}",
                "  .amdhsa_group_segment_fixed_size 0", "  .amdhsa_kernarg_size 96", "  .amdhsa_user_sgpr_count 2",
                "  .amdhsa_user_sgpr_kernarg_segment_ptr 1", "  .amdhsa_system_sgpr_workgroup_id_x 1",
                "  .amdhsa_float_denorm_mode_32 3",
                ".end_amdhsa_kernel"]
        return "\n".join(hdr + self.o + tail) + "\n"

    def stamp_setup(self):
        if not self.stamps:
            return
        e = self.e
        self.srd(84, 38, 0x40000000)
        e(f"s_mul_i32 s88, s2, {16*8}"); e(f"s_add_u32 s88, s88, {WS_STAMP:#x}")

    def tile_dma(self, srd, vE, vO, s_org, rowstride, ldsbase, first, count, win=0):
        e = self.e
        for k in range(count):
            i = first + k
            v = vO if (i >> 1) & 1 else vE
            if win and k >= win: e(f"s_waitcnt vmcnt({win-1})")
            e(f"s_mov_b32 m0, {ldsbase}")
            e(f"s_add_u32 {ldsbase}, {ldsbase}, 1024")
            e(f"buffer_load_dwordx4 {v}, s[{srd}:{srd+3}], {s_org} offen nt lds")
            e(f"s_add_u32 {s_org}, {s_org}, {4*rowstride}")

    def dma_voffs(self, vE, vO, rowstride, t0, t1, st):
        e = self.e
        e(f"v_lshrrev_b32 {t0}, 4, v0")
        e(f"v_and_b32 {t1}, 15, v0")
        e(f"v_lshlrev_b32 {vE}, 1, {t0}")
        e(f"v_xor_b32 {vE}, {vE}, {t1}")
        e(f"v_lshlrev_b32 {vE}, 4, {vE}")
        e(f"s_mov_b32 {st}, {rowstride}")
        e(f"v_mul_lo_u32 {t0}, {t0}, {st}")
        e(f"v_add_u32 {vE}, {vE}, {t0}")
        e(f"v_xor_b32 {vO}, 128, {vE}")

    def frag_reads(self, tbase, fr):
        e = self.e
        e(f"v_add_u32 v22, {tbase}, v20")
        e(f"v_add_u32 v23, {tbase}, v21")
        for nbi in range(2):
            for ks in range(4):
                r = fr + (nbi * 4 + ks) * 4
                e(f"ds_read_b64_tr_b16 v[{r}:{r+1}], v{22+nbi} offset:{ks*8192}")
                e(f"ds_read_b64_tr_b16 v[{r+2}:{r+3}], v{22+nbi} offset:{ks*8192+1024}")

    def mfmas(self, fr, bop, d, first_zero):
        e = self.e
        for ks in range(4):
            for nbi in range(2):
                r = fr + (nbi * 4 + ks) * 4
                dd = f"v[{d+nbi*4}:{d+nbi*4+3}]"
                cc = "0" if (first_zero and ks == 0) else dd
                e(f"v_mfma_f32_16x16x32_bf16 {dd}, v[{r}:{r+3}], v[{bop+ks*4}:{bop+ks*4+3}], {cc}")

    def publish(self, d, soff):
        e = self.e
        e("s_nop 7")
        for r in range(4):
            e(f"v_cndmask_b32 v{28+r}, v{d+r}, v{d+4+r}, s[44:45]")
        for r in range(4):
            e(f"v_and_or_b32 v{28+r}, v{28+r}, s80, v18")
        e(f"buffer_store_dwordx4 v[28:31], v24, s[8:11], {soff} offen sc1")
        e("s_nop 1")

    def poll_loads(self, loads, regs, tmp, scnt):
        e = self.e
        l0, l1 = self.newlab("Lp"), self.newlab("Lpd")
        e(f"s_mov_b32 {scnt}, {SPIN_CAP}")
        self.L(l0)
        for s in loads:
            e(s)
        e("s_waitcnt vmcnt(0)")
        regs = list(regs)
        e(f"v_max3_u32 {tmp}, v{regs[0]}, v{regs[1]}, v{regs[2]}")
        rest = regs[3:]
        while len(rest) >= 2:
            e(f"v_max3_u32 {tmp}, {tmp}, v{rest[0]}, v{rest[1]}"); rest = rest[2:]
        if rest:
            e(f"v_max_u32 {tmp}, {tmp}, v{rest[0]}")
        e(f"v_cmp_eq_u32 vcc, -1, {tmp}")
        e(f"s_sub_u32 {scnt}, {scnt}, 1")
        e(f"s_cbranch_scc1 {l1}")
        e(f"s_cbranch_vccnz {l0}")
        self.L(l1)

    def sum4_halves(self, base, out0, out1):
        e = self.e
        for r in range(16):
            e(f"v_and_b32 v{base+r}, s80, v{base+r}")
        for r in range(4):
            e(f"v_add_f32 v{base+r}, v{base+r}, v{base+4+r}")
            e(f"v_add_f32 v{base+8+r}, v{base+8+r}, v{base+12+r}")
        for r in range(4):
            e(f"v_add_f32 v{base+r}, v{base+r}, v{base+8+r}")
        e("s_nop 1")
        e(f"v_permlane32_swap_b32 v{base}, v{base+2}")
        e(f"v_permlane32_swap_b32 v{base+1}, v{base+3}")
        e("s_nop 1")
        e(f"v_add_f32 {out0}, v{base}, v{base+2}")
        e(f"v_add_f32 {out1}, v{base+1}, v{base+3}")

    def canon(self, v, t):
        e = self.e
        e(f"v_cmp_eq_u32 vcc, -1, {v}")
        e(f"v_mov_b32 {t}, 0x7fc07fc0")
        e("s_nop 0")
        e(f"v_cndmask_b32 {v}, {v}, {t}, vcc")

    def red_row(self, v):
        e = self.e
        for sh in (8, 4, 2, 1):
            e("s_nop 1")
            e(f"v_add_f32_dpp {v}, {v}, {v} row_ror:{sh} row_mask:0xf bank_mask:0xf")

    def red_swap(self, v, t, n):
        e = self.e
        e(f"v_mov_b32 {t}, {v}")
        e("s_nop 1")
        e(f"v_permlane{n}_swap_b32 {v}, {t}")
        e("s_nop 1")
        e(f"v_add_f32 {v}, {v}, {t}")

    def ln_chain(self, vmean, vvar):
        e = self.e
        self.bf16r(vmean, vmean)
        self.bf16r(vvar, vvar)
        e(f"v_add_f32 {vvar}, {f2u(1e-5):#x}, {vvar}")
        self.bf16r(vvar, vvar)
        e(f"v_sqrt_f32 {vvar}, {vvar}")
        e("s_nop 0")
        self.bf16r(vvar, vvar)
        e(f"v_rcp_f32 {vvar}, {vvar}")

    def flag_add(self, voff):
        e = self.e
        e("s_mov_b64 exec, 1")
        e(f"buffer_atomic_add v4, {voff}, s[56:59], 0 offen sc1")
        e("s_mov_b64 exec, -1")

    def flag_wait(self, voff, vt, lanes_lo, sleep):
        e = self.e
        l0, l1 = self.newlab("Lf"), self.newlab("Lfd")
        e(f"s_mov_b32 s53, {SPIN_CAP}")
        e(f"s_mov_b32 exec_lo, {lanes_lo}"); e("s_mov_b32 exec_hi, 0")
        self.L(l0)
        e(f"buffer_load_dword {vt}, {voff}, s[56:59], 0 offen sc1")
        e("s_waitcnt vmcnt(0)")
        e(f"v_cmp_gt_u32 vcc, 8, {vt}")
        e("s_sub_u32 s53, s53, 1"); e(f"s_cbranch_scc1 {l1}")
        e(f"s_cbranch_vccz {l1}")
        e(f"s_sleep {sleep}")
        e(f"s_branch {l0}")
        self.L(l1)
        e("s_mov_b64 exec, -1")

    def poll_masked(self, loads, regs, tmp, scnt, sm, tagged=False, sleep=0, tmp2="v56"):
        e = self.e
        n = len(loads)
        l0, l1 = self.newlab("Lp"), self.newlab("Lpd")
        e(f"s_mov_b32 {scnt}, {SPIN_CAP}")
        for k in range(n):
            e(loads[k])
        self.L(l0)
        for k in range(n):
            r = regs[k]
            if k == 0: e("s_waitcnt vmcnt(0)")
            if tagged:
                e(f"v_perm_b32 {tmp}, v{r+1}, v{r}, s81")
                e(f"v_perm_b32 {tmp2}, v{r+3}, v{r+2}, s82")
                e(f"v_or_b32 {tmp}, {tmp}, {tmp2}")
                e(f"v_cmp_ne_u32 s[{sm+2*k}:{sm+2*k+1}], {tmp}, v19")
            else:
                e(f"v_max3_u32 {tmp}, v{r}, v{r+1}, v{r+2}")
                e(f"v_max_u32 {tmp}, {tmp}, v{r+3}")
                e(f"v_cmp_eq_u32 s[{sm+2*k}:{sm+2*k+1}], -1, {tmp}")
        e(f"s_or_b64 vcc, s[{sm}:{sm+1}], s[{sm+2}:{sm+3}]")
        for k in range(2, n):
            e(f"s_or_b64 vcc, vcc, s[{sm+2*k}:{sm+2*k+1}]")
        e(f"s_cbranch_scc0 {l1}")
        e(f"s_sub_u32 {scnt}, {scnt}, 1")
        e(f"s_cbranch_scc1 {l1}")
        if sleep: e(f"s_sleep {sleep}")
        for k in range(n):
            ls = self.newlab("Lps")
            e(f"s_mov_b64 exec, s[{sm+2*k}:{sm+2*k+1}]")
            e(f"s_cbranch_execz {ls}")
            e(loads[k])
            self.L(ls)
        e("s_mov_b64 exec, -1")
        e(f"s_branch {l0}")
        self.L(l1)

    def flow(self):
        e, c, L = self.e, self.c, self.L
        e("s_lshl_b32 s61, s83, 8")
        e("s_cmp_eq_u32 s3, 2"); e("s_cbranch_scc1 L_f_read")
        e("s_cmp_lg_u32 s3, 1"); e("s_cbranch_scc1 L_f_done")
        c("publisher")
        e("s_lshl_b32 s62, s2, 7"); e(f"s_add_u32 s62, s62, {WS_PR:#x}")
        e("s_mov_b32 s63, -1")
        e("s_mov_b32 exec_hi, 0")
        L("L_f_pub")
        e(f"ds_read_b32 v56, v3 offset:{S_PROG}")
        e("s_waitcnt lgkmcnt(0)")
        e("v_readfirstlane_b32 s6, v56")
        e("s_nop 0")
        e("s_cmp_eq_u32 s6, s63"); e("s_cbranch_scc1 L_f_pubs")
        e("s_mov_b32 s63, s6")
        e(f"s_cmp_ge_u32 s6, {NITEMS-2}"); e("s_cselect_b32 s6, 255, s6")
        e("s_add_u32 s6, s6, s61"); e("v_mov_b32 v57, s6")
        e("buffer_store_dword v57, v25, s[8:11], s62 offen sc1")
        e(f"s_cmp_ge_u32 s63, {NITEMS-2}"); e("s_cbranch_scc1 L_f_pubd")
        L("L_f_pubs")
        e("s_sleep 4")
        e("s_branch L_f_pub")
        L("L_f_pubd")
        e("s_mov_b64 exec, -1")
        e("s_branch L_f_done")
        L("L_f_read")
        c("reader: lane j<7 reads the record of octet member (id+1+j)&7")
        e("v_add_u32 v56, s2, v0"); e("v_add_u32 v56, 1, v56"); e("v_and_b32 v56, 7, v56"); e("v_lshlrev_b32 v61, 7, v56")
        e("s_lshr_b32 s62, s2, 3"); e("s_lshl_b32 s62, s62, 10"); e(f"s_add_u32 s62, s62, {WS_PR:#x}")
        e(f"s_mov_b32 s63, {SPIN_CAP}")
        L("L_f_rd")
        e("v_mov_b32 v57, -1")
        e("s_mov_b64 exec, 0x7f")
        e("buffer_load_dword v57, v61, s[8:11], s62 offen sc1")
        e(f"ds_read_b32 v56, v3 offset:{S_PROG}")
        e("s_waitcnt vmcnt(0) lgkmcnt(0)")
        e("v_subrev_u32 v57, s61, v57")
        e("s_mov_b64 exec, -1")
        e("v_readfirstlane_b32 s6, v56")
        e("v_min_u32 v57, 255, v57")
        e("s_nop 1")
        for sh in (4, 2, 1):
            e(f"v_min_u32_dpp v57, v57, v57 row_ror:{sh} row_mask:0xf bank_mask:0xf"); e("s_nop 1")
        e(f"v_min_u32_dpp v57, v57, v57 row_ror:8 row_mask:0xf bank_mask:0xf")
        e(f"v_add_u32 v57, {self.lead}, v57"); e("v_min_u32 v57, 255, v57"); e("v_sub_u32 v57, 255, v57")
        e(f"s_cmp_ge_u32 s6, {NITEMS-1}"); e("s_cbranch_scc1 L_f_rdd")
        e("s_sub_u32 s63, s63, 1"); e("s_cbranch_scc1 L_f_rdd")
        e("s_mov_b64 exec, 1")
        e(f"ds_write_b32 v3, v57 offset:{S_HOLD}")
        if self.rdsleep: e(f"s_sleep {self.rdsleep}")
        e("s_mov_b64 exec, -1")
        e("s_branch L_f_rd")
        L("L_f_rdd")
        e(f"ds_write_b32 v3, v2 offset:{S_HOLD}")
        L("L_f_done")

    def aux(self):
        e, c, L = self.e, self.c, self.L
        c("================ aux waves (0..3) ================")
        e("s_setprio 3")
        c("wave 0 zero-inits sync words and fills the descriptor queue")
        e("s_cmp_lg_u32 s3, 0"); e("s_cbranch_scc1 L_a_noinit")
        e("v_lshlrev_b32 v5, 2, v0")
        e(f"v_add_u32 v5, {L_SYNC}, v5")
        e("v_cmp_gt_u32 vcc, 16, v0")
        e("s_and_saveexec_b64 s[6:7], vcc")
        e("ds_write_b32 v5, v2")
        e("s_mov_b64 exec, s[6:7]")
        L("L_a_noinit")
        c("lane-derived offsets")
        e("v_lshrrev_b32 v5, 5, v0")
        e("v_and_b32 v6, 31, v0")
        e("v_lshlrev_b32 v6, 4, v6")
        e("v_lshlrev_b32 v7, 11, v5")
        e("v_add_u32 v8, v6, v7")
        e("v_and_b32 v9, 15, v0")
        e("v_lshlrev_b32 v10, 4, v9")
        e("v_add_u32 v10, v10, v7")
        self.dma_voffs("v16", "v17", 8192, "v11", "v12", "s6")
        e("v_lshlrev_b32 v25, 2, v0")
        e("v_mov_b32 v28, -1")
        c("exchange slot offsets: s46 QP, s47/s50 GP, s48 OP, s51 ZO, s52 ZH")
        e("s_lshl_b32 s6, s5, 3"); e("s_add_u32 s6, s6, s4")
        e("s_lshl_b32 s46, s6, 12")
        if WS_QP: e(f"s_add_u32 s46, s46, {WS_QP:#x}")
        e("s_lshl_b32 s47, s6, 13"); e(f"s_add_u32 s47, s47, {WS_GP:#x}")
        e("s_add_u32 s50, s47, 4096")
        e("s_lshl_b32 s48, s2, 12"); e(f"s_add_u32 s48, s48, {WS_OP:#x}")
        e("s_lshl_b32 s49, s6, 8")
        e(f"s_add_u32 s51, s49, {WS_ZO:#x}")
        e(f"s_add_u32 s52, s49, {WS_ZH:#x}")
        c("wq tile quarter: rows c*128 + w*32 .. , cols h*128")
        e("s_lshl_b32 s54, s4, 7"); e("s_lshl_b32 s7, s3, 5"); e("s_add_u32 s54, s54, s7")
        e("s_lshl_b32 s54, s54, 13"); e("s_lshl_b32 s7, s5, 8"); e("s_add_u32 s54, s54, s7")
        e("s_lshl_b32 s55, s3, 13")
        if L_T0: e(f"s_add_u32 s55, s55, {L_T0}")
        e("s_lshl_b32 s6, s3, 12")
        e("s_lshl_b32 s7, s4, 8"); e("s_add_u32 s7, s7, s6")
        e(f"s_mov_b32 s53, {WS_EPOCH:#x}")
        e("s_waitcnt lgkmcnt(0)")
        e("s_load_dword s83, s[38:39], s53")
        self.srd(12, 16, 16384)
        self.srd(40, 22, 8 << 20)
        c("x loads")
        for k in range(4):
            e(f"buffer_load_dwordx4 v[{32+4*k}:{35+4*k}], v8, s[12:15], s6 offen offset:{k*512}")
        e("buffer_load_dwordx4 v[48:51], v10, s[12:15], s7 offen")
        self.tile_dma(40, "v16", "v17", "s54", 8192, "s55", 0, 8)
        self.srd(8, 38, WS_SIZE)
        c("sentinel into the own ZO / ZH slots (complete before this wave publishes its part of QP)")
        e("buffer_store_dword v28, v25, s[8:11], s51 offen sc1")
        e("buffer_store_dword v28, v25, s[8:11], s52 offen sc1")
        e("s_barrier")
        self.stamp_setup()
        c("publish offset v24 = (lam&7)*512 + w*128 + (lam>>3)*64 + G*16")
        e("v_and_b32 v11, 7, v0"); e("v_lshlrev_b32 v24, 9, v11")
        e("v_bfe_u32 v11, v0, 3, 1"); e("v_lshlrev_b32 v11, 6, v11"); e("v_add_u32 v24, v24, v11")
        e("v_lshrrev_b32 v11, 4, v0"); e("v_lshlrev_b32 v12, 4, v11"); e("v_add_u32 v24, v24, v12")
        e("s_lshl_b32 s6, s3, 7"); e("v_add_u32 v24, s6, v24")
        c("tr-read lane addresses v20,v21 (tile relative): (8G+r)*256 + ((nb^g)*32) + cc*8")
        e("v_bfe_u32 v12, v0, 2, 2")
        e("v_and_b32 v13, 3, v0")
        e("v_lshlrev_b32 v14, 3, v11"); e("v_add_u32 v14, v14, v12"); e("v_lshlrev_b32 v14, 8, v14")
        e("v_lshl_add_u32 v14, v13, 3, v14")
        e("v_and_b32 v15, 1, v11"); e("v_lshl_or_b32 v15, v15, 2, v12")
        e("s_lshl_b32 s6, s3, 1")
        e("v_xor_b32 v20, s6, v15"); e("v_xor_b32 v21, 1, v20")
        e("v_lshl_add_u32 v20, v20, 5, v14"); e("v_lshl_add_u32 v21, v21, 5, v14")
        e("v_cmp_lt_u32 s[44:45], 7, v9")
        c("B-operand LDS address v26 = XN + (lam&7)*272 + G*16 ; global B-operand offset v27 = (lam&7)*256 + G*16")
        e("v_and_b32 v12, 7, v0")
        e(f"v_mul_u32_u24 v26, 272, v12"); e("v_lshl_add_u32 v26, v11, 4, v26"); e(f"v_add_u32 v26, {L_XN}, v26")
        e("v_lshlrev_b32 v27, 8, v12"); e("v_lshl_add_u32 v27, v11, 4, v27")
        c("gather offsets: v58 = half*4096 + j*16 (QP), v59 = half*8192 + j*16 (GP), v60 = 8j + 4half")
        e("v_lshl_add_u32 v58, v5, 12, v6"); e("v_lshl_add_u32 v59, v5, 13, v6")
        e("v_lshrrev_b32 v60, 1, v6"); e("v_lshl_add_u32 v60, v5, 2, v60")
        e("s_mov_b32 s80, 0xffffff00"); e("s_mov_b32 s81, 0x0c0c0400"); e("s_mov_b32 s82, 0x04000c0c")
        c("---- layernorm: lanes 0-31 row 2w, lanes 32-63 row 2w+1 ----")
        e("s_mov_b32 s6, 0x3f803f80")
        e("v_mov_b32 v52, 0"); e("v_mov_b32 v53, 0")
        e("s_waitcnt vmcnt(10)")
        for k in range(16):
            e(f"v_dot2c_f32_bf16 v{52+(k&1)}, s6, v{32+k}")
        e("s_nop 2")
        e("v_add_f32 v52, v52, v53")
        self.red_row("v52"); self.red_swap("v52", "v53", 16)
        e(f"v_mul_f32 v52, {f2u(1.0/1024):#x}, v52")
        e("v_mov_b32 v54, 0"); e("v_mov_b32 v55, 0")
        for k in range(16):
            e(f"v_lshlrev_b32 v56, 16, v{32+k}")
            e(f"v_and_b32 v57, 0xffff0000, v{32+k}")
            e("v_sub_f32 v56, v56, v52"); e("v_sub_f32 v57, v57, v52")
            e("v_fmac_f32 v54, v56, v56"); e("v_fmac_f32 v55, v57, v57")
        e("v_add_f32 v54, v54, v55")
        self.red_row("v54"); self.red_swap("v54", "v55", 16)
        e(f"v_mul_f32 v54, {f2u(1.0/1024):#x}, v54")
        self.ln_chain("v52", "v54")
        for k in range(4):
            e(f"v_lshlrev_b32 v56, 16, v{48+k}")
            e(f"v_and_b32 v57, 0xffff0000, v{48+k}")
            e("v_sub_f32 v56, v56, v52"); e("v_sub_f32 v57, v57, v52")
            self.bf16r("v56", "v56"); self.bf16r("v57", "v57")
            e("v_mul_f32 v56, v56, v54"); e("v_mul_f32 v57, v57, v54")
            e(f"v_cvt_pk_bf16_f32 v{48+k}, v56, v57")
        c("write xn slice: XN + (2w+half)*272 + lam*16")
        e("s_mul_i32 s6, s3, 544")
        e("v_mul_u32_u24 v56, 272, v5"); e("v_lshl_add_u32 v56, v9, 4, v56"); e("v_add_u32 v56, s6, v56")
        e(f"v_add_u32 v56, {L_XN}, v56")
        e("ds_write_b128 v56, v[48:51]")
        e("s_waitcnt vmcnt(2) lgkmcnt(0)")
        self.lds_add1("v3", S_AUXBAR, "v4", "s[6:7]")
        c("launch tag: v18 = (epoch+1)&255, v19 = tag in all four bytes")
        e("s_add_u32 s83, s83, 1")
        e("s_and_b32 s6, s83, 0xff"); e("v_mov_b32 v18, s6")
        e("s_mul_i32 s6, s6, 0x01010101"); e("v_mov_b32 v19, s6")
        self.lds_wait_ge("v3", S_AUXBAR, 4, "v56", "s6", sleep=0)
        if self.stamps:
            e("s_cmp_lg_u32 s3, 0"); e("s_cbranch_scc1 L_st1"); self.stamp(1); L("L_st1")
        c("---- q partial GEMM ----")
        for ks in range(4):
            e(f"ds_read_b128 v[{64+4*ks}:{67+4*ks}], v26 offset:{ks*64}")
        self.frag_reads(L_T0, 96)
        e("s_waitcnt lgkmcnt(0)")
        self.mfmas(96, 64, 80, True)
        e("s_waitcnt vmcnt(0)")
        self.publish(80, "s46")
        e("s_cmp_eq_u32 s3, 0"); e("s_cbranch_scc1 L_a0_q")
        c("---- waves 1..3: FFN tile DMA (gate, up, down) ----")
        e("s_cmp_ge_u32 s5, 28"); e("s_cbranch_scc1 L_a_bar2")
        if self.dmaprio is not None: e(f"s_setprio {self.dmaprio}")
        if self.pfw: self.lds_wait_ge("v3", S_PFD, 4, "v56", "s6", sleep=2)
        e("s_cmp_eq_u32 s3, 3"); e("s_cbranch_scc1 L_a3_dma")
        self.dma_voffs("v16", "v17", 7168, "v11", "v12", "s6")
        e("s_cmp_eq_u32 s3, 1")
        e("s_cselect_b32 s40, s28, s30"); e("s_cselect_b32 s41, s29, s31")
        assert L_T1 == 1 << 15 and L_T2 == 2 << 15
        e("s_lshl_b32 s7, s3, 15")
        e(f"s_mov_b32 s42, {7 << 20:#x}"); e("s_mov_b32 s43, 0x20000")
        e(f"s_mul_i32 s6, s4, {128*7168}"); e("s_lshl_b32 s53, s5, 8"); e("s_add_u32 s6, s6, s53")
        self.tile_dma(40, "v16", "v17", "s6", 7168, "s7", 0, 32, win=self.dmaw)
        e("s_branch L_a_bar2")
        L("L_a0_q")
        c("---- wave 0: gather q ----")
        e("s_lshl_b32 s60, s5, 15"); e("s_lshl_b32 s6, s4, 9"); e("s_add_u32 s60, s60, s6")
        if WS_QP: e(f"s_add_u32 s60, s60, {WS_QP:#x}")
        for k in range(1, 4): e(f"s_add_u32 s{60+k}, s60, {k*8192}")
        if self.qdelay: e(f"s_sleep {self.qdelay}")
        self.poll_masked([f"buffer_load_dwordx4 v[{128+4*k}:{131+4*k}], v58, s[8:11], s{60+k} offen sc1" for k in range(4)],
                         [128 + 4 * k for k in range(4)], "v57", "s53", 72, tagged=True)
        self.sum4_halves(128, "v144", "v145")
        e("v_cvt_pk_bf16_f32 v144, v144, v145")
        c("LDS q at 8j+4half")
        e(f"v_add_u32 v61, {L_Q}, v60")
        e("ds_write_b32 v61, v144")
        e("s_mov_b64 exec, 1")
        e(f"ds_add_u32 v3, v4 offset:{S_QRDY}")
        e("s_mov_b64 exec, -1")
        self.stamp(2)
        c("wo tile into T0 (all four waves have consumed the wq tile: their QP parts were gathered)")
        if self.dmaprio is not None: e(f"s_setprio {self.dmaprio}")
        self.srd(40, 24, 8 << 20)
        e(f"s_mov_b32 s7, {L_T0}")
        e("s_branch L_a03_dma")
        L("L_a3_dma")
        self.srd(40, 32, 7 << 20)
        e(f"s_mov_b32 s7, {L_T3}")
        L("L_a03_dma")
        self.dma_voffs("v16", "v17", 2048, "v11", "v12", "s6")
        e("s_lshl_b32 s6, s5, 18"); e("s_lshl_b32 s53, s4, 8"); e("s_add_u32 s6, s6, s53")
        self.tile_dma(40, "v16", "v17", "s6", 2048, "s7", 0, 32, win=self.dmaw)
        L("L_a_bar2")
        if self.dmaprio is not None: e("s_setprio 3")
        c("output element of this lane: n = 4j + 2*bit5 + bit4 within 32-col group; b'=h>>2, col = c*128+(h&3)*32+n")
        e("v_and_b32 v56, 7, v0"); e("v_lshlrev_b32 v56, 2, v56")
        e("v_lshl_add_u32 v56, v5, 1, v56")
        e("v_bfe_u32 v57, v0, 4, 1"); e("v_add_u32 v56, v56, v57")
        e("v_lshlrev_b32 v62, 1, v56")
        e("s_lshr_b32 s6, s5, 2"); e("s_lshl_b32 s6, s6, 11")
        e("s_lshl_b32 s7, s4, 8"); e("s_add_u32 s6, s6, s7")
        e("s_and_b32 s7, s5, 3"); e("s_lshl_b32 s7, s7, 6"); e("s_add_u32 s6, s6, s7")
        e("v_add_u32 v62, s6, v62")
        e("buffer_load_ushort v63, v62, s[12:15], 0 offen")
        c("accumulators for the output partial: v[88:95]")
        for r in range(8): e(f"v_mov_b32 v{88+r}, 0")
        e("s_waitcnt vmcnt(0)")
        self.lds_add1("v3", S_AUXBAR, "v4", "s[6:7]")
        self.lds_wait_ge("v3", S_AUXBAR, 8, "v56", "s6", sleep=4)
        if self.stamps:
            e("s_cmp_lg_u32 s3, 0"); e("s_cbranch_scc1 L_st3"); self.stamp(3); L("L_st3")
        e("s_cmp_ge_u32 s5, 28"); e("s_cbranch_scc1 L_a_ffn_done")
        c("---- gate / up partial GEMMs ----")
        self.frag_reads(L_T1, 96)
        e("s_waitcnt lgkmcnt(0)")
        self.mfmas(96, 64, 80, True)
        self.publish(80, "s47")
        self.frag_reads(L_T2, 96)
        e("s_waitcnt lgkmcnt(0)")
        self.mfmas(96, 64, 80, True)
        self.publish(80, "s50")
        self.frag_reads(L_T3, 96)
        e("s_cmp_lg_u32 s3, 0"); e("s_cbranch_scc1 L_a_zh")
        c("wave 0: gather g,u -> hh -> publish ZH")
        self.lds_wait_ge("v3", S_PROG, self.gp_trig, "v56", "s6", sleep=16)
        e("s_lshl_b32 s60, s5, 16"); e("s_lshl_b32 s6, s4, 9"); e("s_add_u32 s60, s60, s6"); e(f"s_add_u32 s60, s60, {WS_GP:#x}")
        for k in range(1, 4): e(f"s_add_u32 s{60+k}, s60, {k*16384}")
        self.poll_masked([f"buffer_load_dwordx4 v[{128+4*k}:{131+4*k}], v59, s[8:11], s{60+k} offen sc1" for k in range(4)],
                         [128 + 4 * k for k in range(4)], "v57", "s53", 72, tagged=True, sleep=32)
        for k in range(4): e(f"s_add_u32 s{60+k}, s{60+k}, 4096")
        self.poll_masked([f"buffer_load_dwordx4 v[{144+4*k}:{147+4*k}], v59, s[8:11], s{60+k} offen sc1" for k in range(4)],
                         [144 + 4 * k for k in range(4)], "v57", "s53", 72, tagged=True, sleep=32)
        self.sum4_halves(128, "v160", "v161")
        self.sum4_halves(144, "v162", "v163")
        for r in range(4): self.bf16r(f"v{160+r}", f"v{160+r}")
        e("v_mul_f32 v160, v160, v162"); e("v_mul_f32 v161, v161, v163")
        e("v_cvt_pk_bf16_f32 v160, v160, v161")
        self.canon("v160", "v161")
        e("buffer_store_dword v160, v60, s[8:11], s52 offen sc1")
        L("L_a_zh")
        c("all: gather hh of the group as B operands, down GEMM")
        self.lds_wait_ge("v3", S_PROG, self.zh_trig, "v56", "s6", sleep=16)
        e(f"s_lshl_b32 s60, s5, 11"); e(f"s_add_u32 s60, s60, {WS_ZH:#x}")
        self.poll_masked([f"buffer_load_dwordx4 v[{64+4*k}:{67+4*k}], v27, s[8:11], s60 offen offset:{k*64} sc1" for k in range(4)],
                         [64 + 4 * k for k in range(4)], "v57", "s53", 72, sleep=32)
        e("s_waitcnt lgkmcnt(0)")
        self.mfmas(96, 64, 88, False)
        e("s_nop 7")
        L("L_a_ffn_done")
        if self.stamps:
            e("s_cmp_lg_u32 s3, 0"); e("s_cbranch_scc1 L_st4"); self.stamp(4); L("L_st4")
        c("wo fragments")
        self.frag_reads(L_T0, 96)
        e(f"s_lshl_b32 s60, s5, 11"); e(f"s_add_u32 s60, s60, {WS_ZO:#x}")
        if self.lead: self.flow()
        self.lds_wait_ge("v3", S_PROG, NITEMS - 2, "v56", "s6", sleep=16)
        e("s_cmp_lg_u32 s3, 0"); e("s_cbranch_scc1 L_a_late123")
        c("---- wave 0: merge the stream waves' partials ----")
        e("v_lshlrev_b32 v56, 3, v0"); e(f"v_add_u32 v56, {L_PO}, v56")
        e(f"v_mov_b32 v57, {L_PML}")
        self.lds_wait_ge("v3", S_PCNT, 4, "v61", "s6", sleep=0)
        self.stamp(5)
        e("ds_read_b128 v[128:131], v57"); e("ds_read_b128 v[132:135], v57 offset:16")
        for w in range(4): e(f"ds_read_b64 v[{136+2*w}:{137+2*w}], v56 offset:{w*512}")
        e("s_waitcnt lgkmcnt(4)")
        e("v_max3_f32 v144, v128, v130, v132"); e("v_max_f32 v144, v144, v134")
        for w in range(4): e(f"v_sub_f32 v{128+2*w}, v{128+2*w}, v144")
        for w in range(4): e(f"v_exp_f32 v{128+2*w}, v{128+2*w}")
        e("s_nop 0")
        e("v_mul_f32 v145, v128, v129")
        for w in range(1, 4): e(f"v_fmac_f32 v145, v{128+2*w}, v{129+2*w}")
        e("v_rcp_f32 v145, v145")
        e("s_waitcnt lgkmcnt(0)")
        e("v_mul_f32 v146, v128, v136"); e("v_mul_f32 v147, v128, v137")
        for w in range(1, 4):
            e(f"v_fmac_f32 v146, v{128+2*w}, v{136+2*w}"); e(f"v_fmac_f32 v147, v{128+2*w}, v{137+2*w}")
        e("v_mul_f32 v146, v146, v145"); e("v_mul_f32 v147, v147, v145")
        e("v_cvt_pk_bf16_f32 v146, v146, v147")
        self.canon("v146", "v147")
        e("buffer_store_dword v146, v25, s[8:11], s51 offen sc1")
        e("s_branch L_a_zo")
        L("L_a_late123")
        c("waves 1..3 start polling when the local stream is finished")
        self.lds_wait_ge("v3", S_PCNT, 4, "v56", "s6", sleep=1)
        e("s_sleep 4")
        L("L_a_zo")
        self.poll_masked([f"buffer_load_dwordx4 v[{64+4*k}:{67+4*k}], v27, s[8:11], s60 offen offset:{k*64} sc1" for k in range(4)],
                         [64 + 4 * k for k in range(4)], "v57", "s53", 72)
        e("s_waitcnt lgkmcnt(0)")
        self.mfmas(96, 64, 88, False)
        self.publish(88, "s48")
        e("s_cmp_lg_u32 s3, 0"); e("s_cbranch_scc1 L_done")
        self.stamp(6)
        c("---- wave 0: final reduction over the 32 heads' partials ----")
        e("v_lshrrev_b32 v56, 3, v0"); e("v_lshlrev_b32 v56, 12, v56")
        e("v_and_b32 v57, 7, v0"); e("v_lshl_add_u32 v58, v57, 4, v56")
        e("s_lshl_b32 s60, s4, 17"); e("s_lshl_b32 s6, s5, 7"); e("s_add_u32 s60, s60, s6")
        e(f"s_add_u32 s60, s60, {WS_OP:#x}")
        for k in range(1, 4): e(f"s_add_u32 s{60+k}, s60, {k*32768}")
        self.poll_masked([f"buffer_load_dwordx4 v[{128+4*k}:{131+4*k}], v58, s[8:11], s{60+k} offen sc1" for k in range(4)],
                         [128 + 4 * k for k in range(4)], "v57", "s53", 72, tagged=True)
        self.sum4_halves(128, "v144", "v145")
        e("s_nop 1")
        e("v_permlane16_swap_b32 v144, v145")
        e("s_nop 1")
        e("v_add_f32 v144, v144, v145")
        e("v_lshlrev_b32 v63, 16, v63")
        e("s_nop 0")
        e("v_add_f32_dpp v144, v144, v144 row_ror:8 row_mask:0xf bank_mask:0xf")
        e("v_add_f32 v144, v144, v63")
        e("v_cvt_pk_bf16_f32 v144, v144, v144")
        self.srd(40, 34, 16384)
        e("s_mov_b32 exec_lo, 0x00ff00ff"); e("s_mov_b32 exec_hi, 0x00ff00ff")
        e("buffer_store_short v144, v62, s[40:43], 0 offen")
        c("workgroup 0 advances the epoch (every workgroup has read it and used it by now)")
        e("s_cmp_lg_u32 s2, 0"); e("s_cbranch_scc1 L_a_noep")
        e("s_mov_b64 exec, 1")
        e("v_mov_b32 v56, s83"); e(f"v_mov_b32 v57, {WS_EPOCH:#x}")
        e("buffer_store_dword v56, v57, s[8:11], 0 offen")
        L("L_a_noep")
        e("s_mov_b64 exec, -1")
        self.stamp(7)
        e("s_branch L_done")

    def stream(self):
        e, c, L = self.e, self.c, self.L
        RING = 40
        SP = 24
        ACC = 16
        Q = 12
        vM, vL, vS, vT, vPl, vPh, vA = "v32", "v33", "v34", "v35", "v36", "v37", "v38"
        vLane, vOff, vPR = "v5", "v6", "v7"
        vQa, vPo = "v8", "v9"
        vPRl, vPRs = "v39", "v11"
        nbuf = 2 if self.pf == 32 else 1
        fc = self.lead > 0
        c("================ stream waves (4..7) ================")
        e("s_sub_u32 s3, s3, 4")
        e(f"v_lshlrev_b32 {vLane}, 4, v0")
        e("s_lshl_b32 s6, s3, 10")
        e(f"v_add_u32 {vLane}, s6, {vLane}")
        if self.rot == 0:
            for i in range(NK): e(f"s_mov_b32 s{64+i}, {i*4096}")
        else:
            e("s_mov_b32 s6, 0")
            if self.rot & 1: e("s_lshl_b32 s6, s3, 1")
            if self.rot & 2: e("s_lshr_b32 s7, s2, 3"); e("s_add_u32 s6, s6, s7")
            if self.rot & 4: e("s_add_u32 s6, s6, s2")
            e("s_lshl_b32 s6, s6, 12")
            for i in range(NK):
                e(f"s_and_b32 s{64+i}, s6, 0x7000"); e("s_add_u32 s6, s6, 0x1000")
        e("s_lshl_b32 s6, s2, 20")
        e(f"v_add_u32 {vLane}, s6, {vLane}")
        c("s52 = offset (within the head) of the item being issued; the order is rotated per workgroup")
        if self.irot == 0: e("s_mov_b32 s52, 0")
        else:
            e("s_lshr_b32 s52, s2, 3")
            if self.irot == 2: e("s_lshl_b32 s6, s2, 2"); e("s_add_u32 s52, s52, s6")
            e("s_lshl_b32 s52, s52, 15"); e("s_and_b32 s52, s52, 0xf8000")
        e(f"v_add_u32 {vOff}, s52, {vLane}")
        e(f"s_mov_b32 s53, {WS_EPOCH:#x}")
        e("s_waitcnt lgkmcnt(0)")
        self.stamp_setup()
        if self.stamps:
            e("s_cmp_lg_u32 s3, 0"); e("s_cbranch_scc1 L_st0"); self.stamp(0); e("s_waitcnt vmcnt(0)"); L("L_st0")
        self.srd(8, 18, 1 << 28)
        self.srd(12, 20, 1 << 28)
        def slot(buf, kv, i):
            return RING + buf * 64 + kv * 32 + i * 4
        def issue(buf, kv, i):
            r = slot(buf, kv, i)
            srd = "s[8:11]" if kv == 0 else "s[12:15]"
            so = f"s{64+i}"
            e(f"buffer_load_dwordx4 v[{r}:{r+3}], {vOff}, {srd}, {so} offen nt")
        seq = [(buf, kv, i) for buf in range(nbuf) for kv in range(2) for i in range(NK)]
        def issue_seq(n):
            buf, kv, i = seq[n]
            if n == 16:
                e(f"s_add_u32 s6, s52, {ITEM_BYTES}"); e("s_and_b32 s6, s6, 0xf8000"); e(f"v_add_u32 {vOff}, s6, {vLane}")
            if self.pfw and n >= self.pfw: e(f"s_waitcnt vmcnt({self.pfw-1})")
            issue(buf, kv, i)
        for n in range(self.pre): issue_seq(n)
        e("s_barrier")
        c("constants")
        e("v_and_b32 v10, 15, v0")
        e(f"v_lshlrev_b32 {vQa}, 4, v10"); e(f"v_add_u32 {vQa}, {L_Q}, {vQa}")
        e(f"v_lshlrev_b32 {vPo}, 5, v10"); e("v_lshrrev_b32 v11, 4, v0"); e(f"v_lshl_add_u32 {vPo}, v11, 3, {vPo}")
        e("s_lshl_b32 s6, s3, 9"); e(f"s_add_u32 s6, s6, {L_PO}"); e(f"v_add_u32 {vPo}, s6, {vPo}")
        e("v_and_b32 v10, 2, v0"); e("v_cmp_ne_u32 s[46:47], 0, v10")
        e(f"s_mov_b32 s48, {f2u(128 ** -0.5):#x}")
        e(f"s_mov_b32 s49, {f2u(1.4426950408889634):#x}")
        e("s_mov_b32 s53, 0")
        for r in range(8): e(f"v_mov_b32 v{ACC+r}, 0")
        e(f"v_mov_b32 {vM}, 0xff800000"); e(f"v_mov_b32 {vL}, 0")
        for n in range(self.pre, len(seq)): issue_seq(n)
        if self.pfw:
            e("s_mov_b64 exec, 1"); e(f"ds_add_u32 v3, v4 offset:{S_PFD}"); e("s_mov_b64 exec, -1")
        c("wait for q")
        self.lds_wait_ge("v3", S_QRDY, 1, "v10", "s6", sleep=2)
        e(f"ds_read_b128 v[{Q}:{Q+3}], {vQa}")
        if fc: e(f"v_mov_b32 {vPR}, 0")
        if nbuf == 2: e("s_mov_b64 vcc, -1")
        e("s_waitcnt lgkmcnt(0)")
        L("L_s_loop")
        npr = 0
        def issue_next(buf, kv, i):
            if nbuf == 2 and buf == 0:
                ls = self.newlab("Lsk")
                e(f"s_cbranch_vccnz {ls}"); issue(1 - buf, kv, i); L(ls)
            else:
                issue((buf + 1) % nbuf, kv, i)
        for buf in range(nbuf):
            c(f"---- item in buffer {buf} ----")
            c("offset of item t+1 (out of range after the last item)")
            e(f"s_add_u32 s52, s52, {ITEM_BYTES}"); e("s_and_b32 s52, s52, 0xf8000")
            e(f"s_cmp_ge_u32 s53, {NITEMS-1}")
            e(f"s_cselect_b32 s6, {OOB:#x}, s52")
            e(f"v_add_u32 {vOff}, s6, {vLane}")
            if self.stamps:
                e("s_memrealtime s[90:91]"); e("s_waitcnt lgkmcnt(0)")
                e("v_mov_b32 v250, s90"); e("v_mov_b32 v251, s91")
                e("s_lshl_b32 s6, s53, 3"); e(f"s_add_u32 s6, s6, {L_TS}"); e("v_mov_b32 v252, s6")
                e("s_cmp_lg_u32 s3, 0"); lx = self.newlab("Lts"); e(f"s_cbranch_scc1 {lx}")
                e("ds_write_b64 v252, v[250:251]"); L(lx)
            c("progress")
            e("v_mov_b32 v10, s53")
            e(f"ds_max_u32 v3, v10 offset:{S_PROG}")
            if fc:
                lchk, lgo = self.newlab("Lfc"), self.newlab("Lfg")
                c("flow control: S_HOLD = 255 - (last item whose successor may be issued); 0 = no limit")
                L(lchk)
                e(f"ds_read_b32 {vPR}, v3 offset:{S_HOLD}")
                e("s_waitcnt lgkmcnt(0)")
                e(f"v_readfirstlane_b32 s7, {vPR}")
                e("s_nop 0")
                e("s_add_u32 s7, s7, s53")
                e("s_cmp_le_u32 s7, 255"); e(f"s_cbranch_scc1 {lgo}")
                e(f"s_sleep {self.slowsleep}")
                e(f"s_branch {lchk}")
                L(lgo)
            e("s_waitcnt vmcnt(15)")
            e("s_add_u32 s53, s53, 1")
            c("K phase")
            for i in range(NK):
                r = slot(buf, 0, i)
                if i: e(f"s_waitcnt vmcnt({15+npr})")
                e(f"v_dot2_f32_bf16 v{SP+i}, v{r}, v{Q}, 0")
                for j in range(1, 4):
                    e(f"v_dot2_f32_bf16 v{SP+i}, v{r+j}, v{Q+j}, v{SP+i}")
                issue_next(buf, 0, i)
            c("reduce-scatter over the 16 lanes of a row")
            e("s_nop 1")
            for i in range(4):
                e(f"v_add_f32_dpp v{SP+i}, v{SP+i}, v{SP+i} row_ror:8 row_mask:0xf bank_mask:0x3")
            for i in range(4):
                e(f"v_add_f32_dpp v{SP+i}, v{SP+4+i}, v{SP+4+i} row_ror:8 row_mask:0xf bank_mask:0xc")
            for i in range(2):
                e(f"v_add_f32_dpp v{SP+i}, v{SP+i}, v{SP+i} row_shl:4 row_mask:0xf bank_mask:0x5")
            for i in range(2):
                e(f"v_add_f32_dpp v{SP+i}, v{SP+2+i}, v{SP+2+i} row_shr:4 row_mask:0xf bank_mask:0xa")
            e("s_nop 0")
            e(f"v_add_f32_dpp v{SP}, v{SP}, v{SP} quad_perm:[2,3,0,1] row_mask:0xf bank_mask:0xf")
            e(f"v_add_f32_dpp v{SP+1}, v{SP+1}, v{SP+1} quad_perm:[2,3,0,1] row_mask:0xf bank_mask:0xf")
            e(f"v_cndmask_b32 {vS}, v{SP}, v{SP+1}, s[46:47]")
            e("s_nop 1")
            e(f"v_add_f32_dpp {vS}, {vS}, {vS} quad_perm:[1,0,3,2] row_mask:0xf bank_mask:0xf")
            c("lane (g,lam) now holds the raw score of load i = lam>>1, row g")
            self.bf16r(vS, vS)
            e(f"v_mul_f32 {vS}, s48, {vS}")
            self.bf16r(vS, vS)
            e(f"v_mul_f32 {vS}, s49, {vS}")
            e("s_nop 1")
            e(f"v_max_f32_dpp {vT}, {vS}, {vS} row_ror:8 row_mask:0xf bank_mask:0xf")
            e("s_nop 1")
            e(f"v_max_f32_dpp {vT}, {vT}, {vT} row_ror:4 row_mask:0xf bank_mask:0xf")
            e("s_nop 1")
            e(f"v_max_f32_dpp {vT}, {vT}, {vT} row_ror:2 row_mask:0xf bank_mask:0xf")
            e(f"v_mov_b32 {vA}, {vT}")
            e("s_nop 1")
            e(f"v_permlane16_swap_b32 {vT}, {vA}")
            e("s_nop 1")
            e(f"v_max_f32 {vT}, {vT}, {vA}")
            e(f"v_mov_b32 {vA}, {vT}")
            e("s_nop 1")
            e(f"v_permlane32_swap_b32 {vT}, {vA}")
            e("s_nop 1")
            e(f"v_max3_f32 {vT}, {vT}, {vA}, {vM}")
            e(f"v_sub_f32 {vA}, {vM}, {vT}")
            e(f"v_sub_f32 {vS}, {vS}, {vT}")
            e(f"v_exp_f32 {vA}, {vA}")
            e(f"v_exp_f32 {vS}, {vS}")
            e(f"v_mov_b32 {vM}, {vT}")
            e(f"v_cvt_pk_bf16_f32 {vPl}, {vS}, 0")
            e(f"v_cvt_pk_bf16_f32 {vPh}, 0, {vS}")
            for r in range(8): e(f"v_mul_f32 v{ACC+r}, v{ACC+r}, {vA}")
            e(f"v_fma_f32 {vL}, {vL}, {vA}, {vPh}")
            c("V phase")
            for i in range(NK):
                r = slot(buf, 1, i)
                e(f"s_waitcnt vmcnt({15+npr})")
                for j in range(4):
                    e(f"v_dot2c_f32_bf16_dpp v{ACC+2*j}, {vPl}, v{r+j} row_newbcast:{2*i} row_mask:0xf bank_mask:0xf")
                    e(f"v_dot2c_f32_bf16_dpp v{ACC+2*j+1}, {vPh}, v{r+j} row_newbcast:{2*i} row_mask:0xf bank_mask:0xf")
                issue_next(buf, 1, i)
            if nbuf == 2 and buf == 0: e("s_mov_b64 vcc, 0")
        e(f"s_cmp_lt_u32 s53, {NITEMS}"); e("s_cbranch_scc1 L_s_loop")
        L("L_s_end")
        c("flush: reduce rows, write partial o and (m,l)")
        e("s_nop 2")
        for j in range(4):
            e(f"v_permlane32_swap_b32 v{ACC+j}, v{ACC+4+j}")
        e(f"v_add_f32_dpp {vL}, {vL}, {vL} row_ror:8 row_mask:0xf bank_mask:0xf")
        for j in range(4):
            e(f"v_add_f32 v{ACC+j}, v{ACC+j}, v{ACC+4+j}")
        e(f"v_add_f32_dpp {vL}, {vL}, {vL} row_ror:4 row_mask:0xf bank_mask:0xf")
        e("s_nop 0")
        e(f"v_permlane16_swap_b32 v{ACC}, v{ACC+2}")
        e(f"v_permlane16_swap_b32 v{ACC+1}, v{ACC+3}")
        e(f"v_add_f32_dpp {vL}, {vL}, {vL} row_ror:2 row_mask:0xf bank_mask:0xf")
        e(f"v_add_f32 v{ACC}, v{ACC}, v{ACC+2}")
        e(f"v_add_f32 v{ACC+1}, v{ACC+1}, v{ACC+3}")
        e(f"v_mov_b32 {vA}, {vL}")
        e(f"ds_write_b64 {vPo}, v[{ACC}:{ACC+1}]")
        e("s_nop 0")
        e(f"v_permlane16_swap_b32 {vL}, {vA}")
        e("s_nop 1")
        e(f"v_add_f32 {vL}, {vL}, {vA}")
        e(f"v_mov_b32 {vA}, {vL}")
        e("s_nop 1")
        e(f"v_permlane32_swap_b32 {vL}, {vA}")
        e("s_nop 1")
        e(f"v_add_f32 {vL}, {vL}, {vA}")
        e("s_lshl_b32 s6, s3, 3"); e(f"s_add_u32 s6, s6, {L_PML}")
        e("v_mov_b32 v10, s6")
        e("s_mov_b64 exec, 1")
        e(f"ds_write_b64 v10, v[32:33]")
        e(f"ds_add_u32 v3, v4 offset:{S_PCNT}")
        e("s_mov_b64 exec, -1")
        e("s_waitcnt lgkmcnt(0)")
        if self.stamps:
            e("s_cmp_lg_u32 s3, 0"); e("s_cbranch_scc1 L_done")
            e("v_lshlrev_b32 v252, 3, v0"); e(f"v_add_u32 v253, {L_TS}, v252")
            e("ds_read_b64 v[250:251], v253")
            e("s_lshl_b32 s6, s2, 9"); e(f"s_add_u32 s6, s6, {WS_STAMP + 0x100000:#x}")
            e("s_waitcnt lgkmcnt(0)")
            e("buffer_store_dwordx2 v[250:251], v252, s[84:87], s6 offen")

if __name__ == "__main__":
    import argparse
    ap = argparse.ArgumentParser()
    ap.add_argument("-o", dest="out", default="k.s")
    ap.add_argument("--stamps", action="store_true")
    ap.add_argument("--pf", type=int, default=32)
    ap.add_argument("--pre", type=int, default=4)
    ap.add_argument("--pfw", type=int, default=8)
    ap.add_argument("--dmaw", type=int, default=12)
    ap.add_argument("--dmaprio", type=int, default=None)
    ap.add_argument("--qdelay", type=int, default=0)
    ap.add_argument("--gp_trig", type=int, default=8)
    ap.add_argument("--zh_trig", type=int, default=11)
    ap.add_argument("--lead", type=int, default=2)
    ap.add_argument("--slowsleep", type=int, default=4)
    ap.add_argument("--fcmode", default="both")
    ap.add_argument("--stmod", default="sc1")
    ap.add_argument("--ldmod", default="sc1")
    ap.add_argument("--rdsleep", type=int, default=8)
    ap.add_argument("--rot", type=int, default=0)
    ap.add_argument("--irot", type=int, default=0)
    a = ap.parse_args()
    open(a.out, "w").write(Gen(a).build())
```

```python
import sys, struct

KN = "parallel_sum__mha_block_cached__glu_gated_bilinear__decode_kernel"

def f2u(f):
    return struct.unpack("<I", struct.pack("<f", f))[0]

WS_QP = 0x000000
WS_GP = 0x100000
WS_ZO = 0x300000
WS_ZH = 0x310000
WS_OP = 0x400000
WS_EPOCH = 0x320000
WS_PR = 0x330000
WS_PR2 = 0x500000
WS_SIZE = 0x800000
WS_STAMP = 0x20000000

L_T0, L_T1, L_T2, L_T3 = 0, 32768, 65536, 98304
L_XN = 131072
L_Q = L_XN + 8 * 272
L_PO = L_Q + 8 * 256
NSLOT = 2
L_PML = L_PO + NSLOT * 4 * 512
L_SYNC = L_PML + NSLOT * 4 * 8
S_AUXBAR, S_QRDY, S_PROG, S_PFD, S_PCNT, S_HOLD = 0, 4, 8, 12, 16, 24
L_DESC = L_SYNC + 64
L_TS = L_DESC + 256
L_END = L_TS + 512
LDS_BYTES = (L_END + 255) // 256 * 256

NK = 8
ITEM_BYTES = NK * 4 * 1024
NITEMS = (1 << 20) // ITEM_BYTES
D_VALID, D_SWITCH, D_END = 1, 2, 4
OOB = 0x20000000
SPIN_CAP = 20000

class Gen:
    def __init__(self, a):
        self.o = []
        self.lab = 0
        self.__dict__.update(vars(a))
        self.o = []
    def e(self, s):
        self.o.append("    " + s)
    def c(self, s):
        self.o.append("    ; " + s)
    def L(self, name):
        self.o.append(name + ":")
    def newlab(self, p="L"):
        self.lab += 1
        return f"{p}_{self.lab}"
    def nop(self, n):
        if n > 0:
            self.e(f"s_nop {n-1}")

    def srd(self, d, ptr, nbytes):
        e = self.e
        e(f"s_mov_b32 s{d}, s{ptr}"); e(f"s_mov_b32 s{d+1}, s{ptr+1}")
        e(f"s_mov_b32 s{d+2}, {nbytes:#x}"); e(f"s_mov_b32 s{d+3}, 0x20000")

    def lds_wait_ge(self, vaddr, off, target, vt, st, sleep=1):
        e = self.e
        l0, l1 = self.newlab("Lw"), self.newlab("Lwd")
        self.L(l0)
        e(f"ds_read_b32 {vt}, {vaddr} offset:{off}")
        e("s_waitcnt lgkmcnt(0)")
        e(f"v_readfirstlane_b32 {st}, {vt}")
        e("s_nop 0")
        e(f"s_cmp_ge_u32 {st}, {target}")
        e(f"s_cbranch_scc1 {l1}")
        e(f"s_sleep {sleep}")
        e(f"s_branch {l0}")
        self.L(l1)

    def lds_add1(self, vaddr, off, vone, ssave):
        e = self.e
        e(f"s_mov_b64 {ssave}, exec")
        e("s_mov_b64 exec, 1")
        e(f"ds_add_u32 {vaddr}, {vone} offset:{off}")
        e(f"s_mov_b64 exec, {ssave}")

    def stamp(self, idx):
        if self.dbgstamp:
            m = {2: 86, 5: 88, 6: 90, 7: 92}
            if idx in m:
                self.e(f"s_memrealtime s[{m[idx]}:{m[idx]+1}]")
            if idx == 7:
                e = self.e
                e("s_waitcnt lgkmcnt(0)")
                self.srd(56, 36, 256)
                e("s_mov_b64 exec, 1")
                for k, r in enumerate((86, 88, 90, 92)):
                    e(f"s_sub_u32 s6, s{r}, s84"); e("v_mov_b32 v56, s6"); e(f"v_mov_b32 v57, {k*8}")
                    e("buffer_atomic_umax v56, v57, s[56:59], 0 offen sc1")
                    e("s_sub_u32 s6, 100000, s6"); e("v_mov_b32 v58, s6")
                    e("buffer_atomic_umax v58, v57, s[56:59], 0 offen offset:4 sc1")
                    e("s_nop 4")
                e("s_and_b32 s6, s84, 0xffffff"); e("v_mov_b32 v56, s6"); e("v_mov_b32 v57, 32")
                e("buffer_atomic_umax v56, v57, s[56:59], 0 offen sc1")
                e("s_sub_u32 s6, 0x1000000, s6"); e("v_mov_b32 v58, s6")
                e("buffer_atomic_umax v58, v57, s[56:59], 0 offen offset:4 sc1")
            return
        if not self.stamps:
            return
        e = self.e
        e("s_memrealtime s[90:91]")
        e("s_waitcnt lgkmcnt(0)")
        e("v_mov_b32 v164, s90"); e("v_mov_b32 v165, s91")
        e(f"v_mov_b32 v166, {L_TS + 320 + idx * 8}")
        e("ds_write_b64 v166, v[164:165]")
        if idx == 7:
            e("v_lshlrev_b32 v166, 3, v0"); e(f"v_add_u32 v167, {L_TS + 320}, v166")
            e("s_mov_b64 exec, 0xffff")
            e("ds_read_b64 v[164:165], v167")
            e("s_waitcnt lgkmcnt(0)")
            e("buffer_store_dwordx2 v[164:165], v166, s[84:87], s88 offen")
            e("s_mov_b64 exec, -1")

    def bf16r(self, d, s):
        self.e(f"v_cvt_pk_bf16_f32 {d}, 0, {s}")

    def build(self):
        e, c, L = self.e, self.c, self.L
        hdr = []
        hdr.append(f"; @launch grid=(256,1,1) block=({640 if self.lead else 512},1,1) lds={LDS_BYTES}")
        hdr.append('.amdgcn_target "amdgcn-amd-amdhsa--gfx950"')
        hdr += [".text", f".globl {KN}", ".p2align 8", f".type {KN},@function", f"{KN}:"]
        e("s_cmp_ge_u32 s2, 256"); e("s_cbranch_scc1 L_done")
        c("kernarg: s16 x, s18 K, s20 V, s22 wq, s24 wo, s26 Bx, s28 wg, s30 wu, s32 wd, s34 out, s36 dbg, s38 ws")
        e("s_load_dwordx16 s[16:31], s[0:1], 0")
        e("s_load_dwordx8 s[32:39], s[0:1], 64")
        e("v_lshrrev_b32 v1, 6, v0")
        e("v_and_b32 v0, 63, v0")
        e("v_readfirstlane_b32 s3, v1")
        e("s_lshr_b32 s4, s2, 5")
        e("s_and_b32 s5, s2, 31")
        e("v_mov_b32 v2, 0")
        e(f"v_mov_b32 v3, {L_SYNC}")
        e("v_mov_b32 v4, 1")
        if self.lead:
            e("s_cmp_ge_u32 s3, 8"); e("s_cbranch_scc1 L_flow")
        e("s_cmp_ge_u32 s3, 4")
        e("s_cbranch_scc1 L_stream")
        self.aux()
        if self.lead: (self.flow2() if self.fmode == "once" else self.flow())
        L("L_stream")
        self.stream()
        L("L_done")
        e("s_endpgm")
        nv = 168
        tail = ['.section .rodata,"a"', ".p2align 6", f".amdhsa_kernel {KN}",
                f"  .amdhsa_next_free_vgpr {nv}", "  .amdhsa_next_free_sgpr 96", f"  .amdhsa_accum_offset {nv}",
                "  .amdhsa_group_segment_fixed_size 0", "  .amdhsa_kernarg_size 96", "  .amdhsa_user_sgpr_count 2",
                "  .amdhsa_user_sgpr_kernarg_segment_ptr 1", "  .amdhsa_system_sgpr_workgroup_id_x 1",
                "  .amdhsa_float_denorm_mode_32 3",
                ".end_amdhsa_kernel"]
        return "\n".join(hdr + self.o + tail) + "\n"

    def stamp_setup(self):
        if not self.stamps:
            return
        e = self.e
        self.srd(84, 38, 0x40000000)
        e(f"s_mul_i32 s88, s2, {16*8}"); e(f"s_add_u32 s88, s88, {WS_STAMP:#x}")

    def tile_dma(self, srd, vE, vO, s_org, rowstride, ldsbase, first, count, win=0):
        e = self.e
        for k in range(count):
            i = first + k
            v = vO if (i >> 1) & 1 else vE
            if win and k >= win: e(f"s_waitcnt vmcnt({win-1})")
            e(f"s_mov_b32 m0, {ldsbase}")
            e(f"s_add_u32 {ldsbase}, {ldsbase}, 1024")
            e(f"buffer_load_dwordx4 {v}, s[{srd}:{srd+3}], {s_org} offen nt lds")
            e(f"s_add_u32 {s_org}, {s_org}, {4*rowstride}")

    def dma_voffs(self, vE, vO, rowstride, t0, t1, st):
        e = self.e
        e(f"v_lshrrev_b32 {t0}, 4, v0")
        e(f"v_and_b32 {t1}, 15, v0")
        e(f"v_lshlrev_b32 {vE}, 1, {t0}")
        e(f"v_xor_b32 {vE}, {vE}, {t1}")
        e(f"v_lshlrev_b32 {vE}, 4, {vE}")
        e(f"s_mov_b32 {st}, {rowstride}")
        e(f"v_mul_lo_u32 {t0}, {t0}, {st}")
        e(f"v_add_u32 {vE}, {vE}, {t0}")
        e(f"v_xor_b32 {vO}, 128, {vE}")

    def frag_reads(self, tbase, fr):
        e = self.e
        e(f"v_add_u32 v22, {tbase}, v20")
        e(f"v_add_u32 v23, {tbase}, v21")
        for nbi in range(2):
            for ks in range(4):
                r = fr + (nbi * 4 + ks) * 4
                e(f"ds_read_b64_tr_b16 v[{r}:{r+1}], v{22+nbi} offset:{ks*8192}")
                e(f"ds_read_b64_tr_b16 v[{r+2}:{r+3}], v{22+nbi} offset:{ks*8192+1024}")

    def mfmas(self, fr, bop, d, first_zero):
        e = self.e
        for ks in range(4):
            for nbi in range(2):
                r = fr + (nbi * 4 + ks) * 4
                dd = f"v[{d+nbi*4}:{d+nbi*4+3}]"
                cc = "0" if (first_zero and ks == 0) else dd
                e(f"v_mfma_f32_16x16x32_bf16 {dd}, v[{r}:{r+3}], v[{bop+ks*4}:{bop+ks*4+3}], {cc}")

    def publish(self, d, soff):
        e = self.e
        e("s_nop 7")
        for r in range(4):
            e(f"v_cndmask_b32 v{28+r}, v{d+r}, v{d+4+r}, s[44:45]")
        for r in range(4):
            e(f"v_add_u32 v{28+r}, 0x80, v{28+r}")
        for r in range(4):
            e(f"v_and_or_b32 v{28+r}, v{28+r}, s80, v18")
        e(f"buffer_store_dwordx4 v[28:31], v24, s[8:11], {soff} offen sc1")
        e("s_nop 1")

    def poll_loads(self, loads, regs, tmp, scnt):
        e = self.e
        l0, l1 = self.newlab("Lp"), self.newlab("Lpd")
        e(f"s_mov_b32 {scnt}, {SPIN_CAP}")
        self.L(l0)
        for s in loads:
            e(s)
        e("s_waitcnt vmcnt(0)")
        regs = list(regs)
        e(f"v_max3_u32 {tmp}, v{regs[0]}, v{regs[1]}, v{regs[2]}")
        rest = regs[3:]
        while len(rest) >= 2:
            e(f"v_max3_u32 {tmp}, {tmp}, v{rest[0]}, v{rest[1]}"); rest = rest[2:]
        if rest:
            e(f"v_max_u32 {tmp}, {tmp}, v{rest[0]}")
        e(f"v_cmp_eq_u32 vcc, -1, {tmp}")
        e(f"s_sub_u32 {scnt}, {scnt}, 1")
        e(f"s_cbranch_scc1 {l1}")
        e(f"s_cbranch_vccnz {l0}")
        self.L(l1)

    def sum4_halves(self, base, out0, out1):
        e = self.e
        for r in range(16):
            e(f"v_and_b32 v{base+r}, s80, v{base+r}")
        for r in range(4):
            e(f"v_add_f32 v{base+r}, v{base+r}, v{base+4+r}")
            e(f"v_add_f32 v{base+8+r}, v{base+8+r}, v{base+12+r}")
        for r in range(4):
            e(f"v_add_f32 v{base+r}, v{base+r}, v{base+8+r}")
        e("s_nop 1")
        e(f"v_permlane32_swap_b32 v{base}, v{base+2}")
        e(f"v_permlane32_swap_b32 v{base+1}, v{base+3}")
        e("s_nop 1")
        e(f"v_add_f32 {out0}, v{base}, v{base+2}")
        e(f"v_add_f32 {out1}, v{base+1}, v{base+3}")

    def canon(self, v, t):
        e = self.e
        e(f"v_cmp_eq_u32 vcc, -1, {v}")
        e(f"v_mov_b32 {t}, 0x7fc07fc0")
        e("s_nop 0")
        e(f"v_cndmask_b32 {v}, {v}, {t}, vcc")

    def red_row(self, v):
        e = self.e
        for sh in (8, 4, 2, 1):
            e("s_nop 1")
            e(f"v_add_f32_dpp {v}, {v}, {v} row_ror:{sh} row_mask:0xf bank_mask:0xf")

    def red_swap(self, v, t, n):
        e = self.e
        e(f"v_mov_b32 {t}, {v}")
        e("s_nop 1")
        e(f"v_permlane{n}_swap_b32 {v}, {t}")
        e("s_nop 1")
        e(f"v_add_f32 {v}, {v}, {t}")

    def ln_chain(self, vmean, vvar):
        e = self.e
        self.bf16r(vmean, vmean)
        self.bf16r(vvar, vvar)
        e(f"v_add_f32 {vvar}, {f2u(1e-5):#x}, {vvar}")
        self.bf16r(vvar, vvar)
        e(f"v_sqrt_f32 {vvar}, {vvar}")
        e("s_nop 0")
        self.bf16r(vvar, vvar)
        e(f"v_rcp_f32 {vvar}, {vvar}")

    def flag_add(self, voff):
        e = self.e
        e("s_mov_b64 exec, 1")
        e(f"buffer_atomic_add v4, {voff}, s[56:59], 0 offen sc1")
        e("s_mov_b64 exec, -1")

    def flag_wait(self, voff, vt, lanes_lo, sleep):
        e = self.e
        l0, l1 = self.newlab("Lf"), self.newlab("Lfd")
        e(f"s_mov_b32 s53, {SPIN_CAP}")
        e(f"s_mov_b32 exec_lo, {lanes_lo}"); e("s_mov_b32 exec_hi, 0")
        self.L(l0)
        e(f"buffer_load_dword {vt}, {voff}, s[56:59], 0 offen sc1")
        e("s_waitcnt vmcnt(0)")
        e(f"v_cmp_gt_u32 vcc, 8, {vt}")
        e("s_sub_u32 s53, s53, 1"); e(f"s_cbranch_scc1 {l1}")
        e(f"s_cbranch_vccz {l1}")
        e(f"s_sleep {sleep}")
        e(f"s_branch {l0}")
        self.L(l1)
        e("s_mov_b64 exec, -1")

    def poll_masked(self, loads, regs, tmp, scnt, sm, tagged=False, sleep=0, tmp2="v56", st1=None):
        e = self.e
        n = len(loads)
        l0, l1 = self.newlab("Lp"), self.newlab("Lpd")
        e(f"s_mov_b32 {scnt}, {SPIN_CAP}")
        for k in range(n):
            e(loads[k])
        if st1 is not None and self.stamps:
            e(f"s_waitcnt vmcnt({n})"); self.stamp(st1)
            e("s_waitcnt vmcnt(0)"); self.stamp(st1 + 1)
        self.L(l0)
        for k in range(n):
            r = regs[k]
            if k == 0: e("s_waitcnt vmcnt(0)")
            if tagged:
                e(f"v_perm_b32 {tmp}, v{r+1}, v{r}, s81")
                e(f"v_perm_b32 {tmp2}, v{r+3}, v{r+2}, s82")
                e(f"v_or_b32 {tmp}, {tmp}, {tmp2}")
                e(f"v_cmp_ne_u32 s[{sm+2*k}:{sm+2*k+1}], {tmp}, v19")
            else:
                e(f"v_max3_u32 {tmp}, v{r}, v{r+1}, v{r+2}")
                e(f"v_max_u32 {tmp}, {tmp}, v{r+3}")
                e(f"v_cmp_eq_u32 s[{sm+2*k}:{sm+2*k+1}], -1, {tmp}")
        e(f"s_or_b64 vcc, s[{sm}:{sm+1}], s[{sm+2}:{sm+3}]")
        for k in range(2, n):
            e(f"s_or_b64 vcc, vcc, s[{sm+2*k}:{sm+2*k+1}]")
        e(f"s_cbranch_scc0 {l1}")
        e(f"s_sub_u32 {scnt}, {scnt}, 1")
        e(f"s_cbranch_scc1 {l1}")
        if sleep: e(f"s_sleep {sleep}")
        for k in range(n):
            ls = self.newlab("Lps")
            e(f"s_mov_b64 exec, s[{sm+2*k}:{sm+2*k+1}]")
            e(f"s_cbranch_execz {ls}")
            e(loads[k])
            self.L(ls)
        e("s_mov_b64 exec, -1")
        e(f"s_branch {l0}")
        self.L(l1)

    def flow(self):
        e, c, L = self.e, self.c, self.L
        L("L_flow")
        c("================ flow-control waves (8, 9) ================")
        e("s_setprio 2")
        e(f"s_mov_b32 s53, {WS_EPOCH:#x}")
        e("v_lshlrev_b32 v25, 2, v0")
        e("s_waitcnt lgkmcnt(0)")
        e("s_load_dword s83, s[38:39], s53")
        self.srd(8, 38, WS_SIZE)
        e("s_barrier")
        self.lds_wait_ge("v3", S_PROG, self.fstart, "v56", "s6", sleep=8)
        e("s_add_u32 s83, s83, 1")
        e("s_lshl_b32 s61, s83, 8")
        e("s_cmp_eq_u32 s3, 9"); e("s_cbranch_scc1 L_f_read")
        c("publisher")
        e("s_lshl_b32 s62, s2, 7"); e(f"s_add_u32 s62, s62, {WS_PR:#x}")
        e("s_mov_b32 s63, -1")
        e("s_mov_b32 exec_hi, 0")
        L("L_f_pub")
        e(f"ds_read_b32 v56, v3 offset:{S_PROG}")
        e("s_waitcnt lgkmcnt(0)")
        e("v_readfirstlane_b32 s6, v56")
        e("s_nop 0")
        e("s_cmp_eq_u32 s6, s63"); e("s_cbranch_scc1 L_f_pubs")
        e("s_mov_b32 s63, s6")
        e(f"s_cmp_ge_u32 s6, {NITEMS-2}"); e("s_cselect_b32 s6, 255, s6")
        e("s_add_u32 s6, s6, s61"); e("v_mov_b32 v57, s6")
        e("buffer_store_dword v57, v25, s[8:11], s62 offen sc1")
        e(f"s_cmp_ge_u32 s63, {NITEMS-2}"); e("s_cbranch_scc1 L_f_pubd")
        L("L_f_pubs")
        e("s_sleep 4")
        e("s_branch L_f_pub")
        L("L_f_pubd")
        e("s_endpgm")
        L("L_f_read")
        c("reader: lane j<7 reads the record of octet member (id+1+j)&7")
        e("v_add_u32 v56, s2, v0"); e("v_add_u32 v56, 1, v56"); e("v_and_b32 v56, 7, v56"); e("v_lshlrev_b32 v61, 7, v56")
        if self.peers == "oct":
            e("s_lshr_b32 s62, s2, 3"); e("s_lshl_b32 s62, s62, 10"); e(f"s_add_u32 s62, s62, {WS_PR:#x}")
        else:
            c("... taken from octet (id>>3) + j*j + j + 1")
            e("v_mad_u32_u24 v56, v0, v0, v0"); e("s_lshr_b32 s62, s2, 3"); e("s_add_u32 s62, s62, 1")
            e("v_add_u32 v56, s62, v56"); e("v_and_b32 v56, 31, v56"); e("v_lshl_add_u32 v61, v56, 10, v61")
            e(f"s_mov_b32 s62, {WS_PR:#x}")
        e(f"s_mov_b32 s63, {SPIN_CAP}")
        NP = self.rdpipe
        for p in range(NP): e(f"v_mov_b32 v{64+p}, -1")
        e("s_mov_b64 exec, 0x7f")
        for p in range(NP - 1):
            e(f"buffer_load_dword v{64+p}, v61, s[8:11], s62 offen sc1")
            if self.rdsleep: e(f"s_sleep {self.rdsleep}")
        L("L_f_rd")
        for p in range(NP):
            e("s_mov_b64 exec, 0x7f")
            e(f"buffer_load_dword v{64+(p+NP-1)%NP}, v61, s[8:11], s62 offen sc1")
            e(f"ds_read_b32 v56, v3 offset:{S_PROG}")
            e("s_mov_b64 exec, -1")
            e("v_mov_b32 v57, -1")
            e("s_mov_b64 exec, 0x7f")
            e(f"s_waitcnt vmcnt({NP-1}) lgkmcnt(0)")
            e(f"v_subrev_u32 v57, s61, v{64+p}")
            e("s_mov_b64 exec, -1")
            e("v_readfirstlane_b32 s6, v56")
            e("v_min_u32 v57, 255, v57")
            e("s_nop 1")
            for sh in (4, 2, 1):
                e(f"v_min_u32_dpp v57, v57, v57 row_ror:{sh} row_mask:0xf bank_mask:0xf"); e("s_nop 1")
            e(f"v_min_u32_dpp v57, v57, v57 row_ror:8 row_mask:0xf bank_mask:0xf")
            e(f"s_cmp_ge_u32 s6, {self.tight}"); e(f"s_cselect_b32 s7, {self.lead2}, {self.lead}")
            e(f"v_add_u32 v57, s7, v57"); e("v_min_u32 v57, 255, v57"); e("v_sub_u32 v57, 255, v57")
            e(f"s_cmp_ge_u32 s6, {NITEMS-1}"); e("s_cbranch_scc1 L_f_rdd")
            e("s_sub_u32 s63, s63, 1"); e("s_cbranch_scc1 L_f_rdd")
            e("s_mov_b64 exec, 1")
            e(f"ds_write_b32 v3, v57 offset:{S_HOLD}")
            if self.rdsleep: e(f"s_sleep {self.rdsleep}")
        e("s_branch L_f_rd")
        L("L_f_rdd")
        e(f"ds_write_b32 v3, v2 offset:{S_HOLD}")
        e("s_endpgm")

    def flow2(self):
        e, c, L = self.e, self.c, self.L
        P = self.fper
        L("L_flow")
        c("================ flow-control waves (8, 9) ================")
        e("s_setprio 2")
        e(f"s_mov_b32 s53, {WS_EPOCH:#x}")
        e("v_lshlrev_b32 v25, 2, v0")
        e("s_waitcnt lgkmcnt(0)")
        e("s_load_dword s83, s[38:39], s53")
        self.srd(8, 38, WS_SIZE)
        e("s_barrier")
        e(f"s_mov_b32 s63, {self.fstart}")
        e("s_waitcnt lgkmcnt(0)")
        e("s_add_u32 s83, s83, 1")
        e("v_mov_b32 v57, s83")
        e("s_cmp_eq_u32 s3, 9"); e("s_cbranch_scc1 L_f_read")
        c("publisher")
        e("s_lshl_b32 s62, s2, 12"); e(f"s_add_u32 s62, s62, {WS_PR2 + self.fstart * 128:#x}")
        e("s_mov_b32 exec_hi, 0")
        L("L_f_pub")
        self.lds_wait_ge("v3", S_PROG, "s63", "v56", "s6", sleep=2)
        e("buffer_store_dword v57, v25, s[8:11], s62 offen sc1")
        e(f"s_add_u32 s62, s62, {128*P}"); e(f"s_add_u32 s63, s63, {P}")
        e(f"s_cmp_le_u32 s63, {NITEMS - 2 - self.lead}"); e("s_cbranch_scc1 L_f_pub")
        e("s_endpgm")
        L("L_f_read")
        c("reader: lane j<7 watches workgroup ((id+1+j)&7) of octet (id>>3) + j*j + j + 1")
        e("v_add_u32 v56, s2, v0"); e("v_add_u32 v56, 1, v56"); e("v_and_b32 v56, 7, v56"); e("v_lshlrev_b32 v61, 12, v56")
        e("v_mad_u32_u24 v56, v0, v0, v0"); e("s_lshr_b32 s62, s2, 3"); e("s_add_u32 s62, s62, 1")
        e("v_add_u32 v56, s62, v56"); e("v_and_b32 v56, 31, v56"); e("v_lshl_add_u32 v61, v56, 15, v61")
        e(f"s_mov_b32 s62, {WS_PR2 + self.fstart * 128:#x}")
        e(f"s_mov_b32 s54, {SPIN_CAP}")
        e(f"v_mov_b32 v58, {255 - (self.fstart + self.lead - 1)}")
        e(f"ds_write_b32 v3, v58 offset:{S_HOLD}")
        L("L_f_rd")
        e(f"s_add_u32 s55, s63, {self.rdat}")
        self.lds_wait_ge("v3", S_PROG, "s55", "v56", "s6", sleep=2)
        if self.rdsleep: e(f"s_sleep {self.rdsleep}")
        e(f"s_mov_b64 exec, {(1 << self.npeer) - 1:#x}")
        L("L_f_rt")
        e("buffer_load_dword v59, v61, s[8:11], s62 offen sc1")
        e("s_waitcnt vmcnt(0)")
        e("v_cmp_ne_u32 vcc, v59, v57")
        e("s_sub_u32 s54, s54, 1"); e("s_cbranch_scc1 L_f_rdd")
        e("s_and_b64 exec, exec, vcc")
        e("s_cbranch_execz L_f_ok")
        if self.rtsleep: e(f"s_sleep {self.rtsleep}")
        e("s_branch L_f_rt")
        L("L_f_ok")
        e("s_mov_b64 exec, -1")
        e(f"v_subrev_u32 v58, {P}, v58")
        e(f"ds_write_b32 v3, v58 offset:{S_HOLD}")
        e(f"s_add_u32 s62, s62, {128*P}"); e(f"s_add_u32 s63, s63, {P}")
        e(f"s_cmp_le_u32 s63, {NITEMS - 2 - self.lead}"); e("s_cbranch_scc1 L_f_rd")
        L("L_f_rdd")
        e("s_mov_b64 exec, -1")
        e(f"ds_write_b32 v3, v2 offset:{S_HOLD}")
        e("s_endpgm")

    def aux(self):
        e, c, L = self.e, self.c, self.L
        c("================ aux waves (0..3) ================")
        e("s_setprio 3")
        if self.dbgstamp: e("s_memrealtime s[84:85]")
        c("wave 0 zero-inits sync words and fills the descriptor queue")
        e("s_cmp_lg_u32 s3, 0"); e("s_cbranch_scc1 L_a_noinit")
        e("v_lshlrev_b32 v5, 2, v0")
        e(f"v_add_u32 v5, {L_SYNC}, v5")
        e("v_cmp_gt_u32 vcc, 16, v0")
        e("s_and_saveexec_b64 s[6:7], vcc")
        e("ds_write_b32 v5, v2")
        e("s_mov_b64 exec, s[6:7]")
        L("L_a_noinit")
        c("lane-derived offsets")
        e("v_lshrrev_b32 v5, 5, v0")
        e("v_and_b32 v6, 31, v0")
        e("v_lshlrev_b32 v6, 4, v6")
        e("v_lshlrev_b32 v7, 11, v5")
        e("v_add_u32 v8, v6, v7")
        e("v_and_b32 v9, 15, v0")
        e("v_lshlrev_b32 v10, 4, v9")
        e("v_add_u32 v10, v10, v7")
        self.dma_voffs("v16", "v17", 8192, "v11", "v12", "s6")
        e("v_lshlrev_b32 v25, 2, v0")
        e("v_mov_b32 v28, -1")
        c("exchange slot offsets: s46 QP, s47/s50 GP, s48 OP, s51 ZO, s52 ZH")
        e("s_lshl_b32 s6, s5, 3"); e("s_add_u32 s6, s6, s4")
        e("s_lshl_b32 s46, s6, 12")
        if WS_QP: e(f"s_add_u32 s46, s46, {WS_QP:#x}")
        e("s_lshl_b32 s47, s6, 13"); e(f"s_add_u32 s47, s47, {WS_GP:#x}")
        e("s_add_u32 s50, s47, 4096")
        e("s_lshl_b32 s48, s2, 12"); e(f"s_add_u32 s48, s48, {WS_OP:#x}")
        e("s_lshl_b32 s49, s6, 8")
        e(f"s_add_u32 s51, s49, {WS_ZO:#x}")
        e(f"s_add_u32 s52, s49, {WS_ZH:#x}")
        c("wq tile quarter: rows c*128 + w*32 .. , cols h*128")
        e("s_lshl_b32 s54, s4, 7"); e("s_lshl_b32 s7, s3, 5"); e("s_add_u32 s54, s54, s7")
        e("s_lshl_b32 s54, s54, 13"); e("s_lshl_b32 s7, s5, 8"); e("s_add_u32 s54, s54, s7")
        e("s_lshl_b32 s55, s3, 13")
        if L_T0: e(f"s_add_u32 s55, s55, {L_T0}")
        e("s_lshl_b32 s6, s3, 12")
        e("s_lshl_b32 s7, s4, 8"); e("s_add_u32 s7, s7, s6")
        e(f"s_mov_b32 s53, {WS_EPOCH:#x}")
        e("s_waitcnt lgkmcnt(0)")
        e("s_load_dword s83, s[38:39], s53")
        self.srd(12, 16, 16384)
        self.srd(40, 22, 8 << 20)
        c("x loads")
        for k in range(4):
            e(f"buffer_load_dwordx4 v[{32+4*k}:{35+4*k}], v8, s[12:15], s6 offen offset:{k*512}")
        e("buffer_load_dwordx4 v[48:51], v10, s[12:15], s7 offen")
        self.tile_dma(40, "v16", "v17", "s54", 8192, "s55", 0, 8)
        self.srd(8, 38, WS_SIZE)
        c("sentinel into the own ZO / ZH slots (complete before this wave publishes its part of QP)")
        e("buffer_store_dword v28, v25, s[8:11], s51 offen sc1")
        e("buffer_store_dword v28, v25, s[8:11], s52 offen sc1")
        e("s_barrier")
        self.stamp_setup()
        c("publish offset v24 = (lam&7)*512 + w*128 + (lam>>3)*64 + G*16")
        e("v_and_b32 v11, 7, v0"); e("v_lshlrev_b32 v24, 9, v11")
        e("v_bfe_u32 v11, v0, 3, 1"); e("v_lshlrev_b32 v11, 6, v11"); e("v_add_u32 v24, v24, v11")
        e("v_lshrrev_b32 v11, 4, v0"); e("v_lshlrev_b32 v12, 4, v11"); e("v_add_u32 v24, v24, v12")
        e("s_lshl_b32 s6, s3, 7"); e("v_add_u32 v24, s6, v24")
        c("tr-read lane addresses v20,v21 (tile relative): (8G+r)*256 + ((nb^g)*32) + cc*8")
        e("v_bfe_u32 v12, v0, 2, 2")
        e("v_and_b32 v13, 3, v0")
        e("v_lshlrev_b32 v14, 3, v11"); e("v_add_u32 v14, v14, v12"); e("v_lshlrev_b32 v14, 8, v14")
        e("v_lshl_add_u32 v14, v13, 3, v14")
        e("v_and_b32 v15, 1, v11"); e("v_lshl_or_b32 v15, v15, 2, v12")
        e("s_lshl_b32 s6, s3, 1")
        e("v_xor_b32 v20, s6, v15"); e("v_xor_b32 v21, 1, v20")
        e("v_lshl_add_u32 v20, v20, 5, v14"); e("v_lshl_add_u32 v21, v21, 5, v14")
        e("v_cmp_lt_u32 s[44:45], 7, v9")
        c("B-operand LDS address v26 = XN + (lam&7)*272 + G*16 ; global B-operand offset v27 = (lam&7)*256 + G*16")
        e("v_and_b32 v12, 7, v0")
        e(f"v_mul_u32_u24 v26, 272, v12"); e("v_lshl_add_u32 v26, v11, 4, v26"); e(f"v_add_u32 v26, {L_XN}, v26")
        e("v_lshlrev_b32 v27, 8, v12"); e("v_lshl_add_u32 v27, v11, 4, v27")
        c("gather offsets: v58 = half*4096 + j*16 (QP), v59 = half*8192 + j*16 (GP), v60 = 8j + 4half")
        e("v_lshl_add_u32 v58, v5, 12, v6"); e("v_lshl_add_u32 v59, v5, 13, v6")
        e("v_lshrrev_b32 v60, 1, v6"); e("v_lshl_add_u32 v60, v5, 2, v60")
        e("s_mov_b32 s80, 0xffffff00"); e("s_mov_b32 s81, 0x0c0c0400"); e("s_mov_b32 s82, 0x04000c0c")
        c("---- layernorm: lanes 0-31 row 2w, lanes 32-63 row 2w+1 ----")
        e("s_mov_b32 s6, 0x3f803f80")
        e("v_mov_b32 v52, 0"); e("v_mov_b32 v53, 0")
        e("s_waitcnt vmcnt(10)")
        for k in range(16):
            e(f"v_dot2c_f32_bf16 v{52+(k&1)}, s6, v{32+k}")
        e("s_nop 2")
        e("v_add_f32 v52, v52, v53")
        self.red_row("v52"); self.red_swap("v52", "v53", 16)
        e(f"v_mul_f32 v52, {f2u(1.0/1024):#x}, v52")
        e("v_mov_b32 v54, 0"); e("v_mov_b32 v55, 0")
        for k in range(16):
            e(f"v_lshlrev_b32 v56, 16, v{32+k}")
            e(f"v_and_b32 v57, 0xffff0000, v{32+k}")
            e("v_sub_f32 v56, v56, v52"); e("v_sub_f32 v57, v57, v52")
            e("v_fmac_f32 v54, v56, v56"); e("v_fmac_f32 v55, v57, v57")
        e("v_add_f32 v54, v54, v55")
        self.red_row("v54"); self.red_swap("v54", "v55", 16)
        e(f"v_mul_f32 v54, {f2u(1.0/1024):#x}, v54")
        self.ln_chain("v52", "v54")
        for k in range(4):
            e(f"v_lshlrev_b32 v56, 16, v{48+k}")
            e(f"v_and_b32 v57, 0xffff0000, v{48+k}")
            e("v_sub_f32 v56, v56, v52"); e("v_sub_f32 v57, v57, v52")
            self.bf16r("v56", "v56"); self.bf16r("v57", "v57")
            e("v_mul_f32 v56, v56, v54"); e("v_mul_f32 v57, v57, v54")
            e(f"v_cvt_pk_bf16_f32 v{48+k}, v56, v57")
        c("write xn slice: XN + (2w+half)*272 + lam*16")
        e("s_mul_i32 s6, s3, 544")
        e("v_mul_u32_u24 v56, 272, v5"); e("v_lshl_add_u32 v56, v9, 4, v56"); e("v_add_u32 v56, s6, v56")
        e(f"v_add_u32 v56, {L_XN}, v56")
        e("ds_write_b128 v56, v[48:51]")
        e("s_waitcnt vmcnt(2) lgkmcnt(0)")
        self.lds_add1("v3", S_AUXBAR, "v4", "s[6:7]")
        c("launch tag: v18 = (epoch+1)&255, v19 = tag in all four bytes")
        e("s_add_u32 s83, s83, 1")
        e("s_and_b32 s6, s83, 0xff"); e("v_mov_b32 v18, s6")
        e("s_mul_i32 s6, s6, 0x01010101"); e("v_mov_b32 v19, s6")
        self.lds_wait_ge("v3", S_AUXBAR, 4, "v56", "s6", sleep=0)
        if self.stamps:
            e("s_cmp_lg_u32 s3, 0"); e("s_cbranch_scc1 L_st1"); self.stamp(1); L("L_st1")
        c("---- q partial GEMM ----")
        for ks in range(4):
            e(f"ds_read_b128 v[{64+4*ks}:{67+4*ks}], v26 offset:{ks*64}")
        self.frag_reads(L_T0, 96)
        e("s_waitcnt lgkmcnt(0)")
        self.mfmas(96, 64, 80, True)
        if self.stamps:
            e("s_cmp_lg_u32 s3, 0"); e("s_cbranch_scc1 L_st8"); self.stamp(8); L("L_st8")
        e("s_waitcnt vmcnt(0)")
        if self.stamps:
            e("s_cmp_lg_u32 s3, 0"); e("s_cbranch_scc1 L_st9"); self.stamp(9); L("L_st9")
        self.publish(80, "s46")
        e("s_cmp_eq_u32 s3, 0"); e("s_cbranch_scc1 L_a0_q")
        c("---- waves 1..3: FFN tile DMA (gate, up, down) ----")
        e("s_cmp_ge_u32 s5, 28"); e("s_cbranch_scc1 L_a_bar2")
        if self.dmaprio is not None: e(f"s_setprio {self.dmaprio}")
        if self.pfw: self.lds_wait_ge("v3", S_PFD, 4, "v56", "s6", sleep=2)
        e("s_cmp_eq_u32 s3, 3"); e("s_cbranch_scc1 L_a3_dma")
        self.dma_voffs("v16", "v17", 7168, "v11", "v12", "s6")
        e("s_cmp_eq_u32 s3, 1")
        e("s_cselect_b32 s40, s28, s30"); e("s_cselect_b32 s41, s29, s31")
        assert L_T1 == 1 << 15 and L_T2 == 2 << 15
        e("s_lshl_b32 s7, s3, 15")
        e(f"s_mov_b32 s42, {7 << 20:#x}"); e("s_mov_b32 s43, 0x20000")
        e(f"s_mul_i32 s6, s4, {128*7168}"); e("s_lshl_b32 s53, s5, 8"); e("s_add_u32 s6, s6, s53")
        self.tile_dma(40, "v16", "v17", "s6", 7168, "s7", 0, 32, win=self.dmaw)
        e("s_branch L_a_bar2")
        L("L_a0_q")
        c("---- wave 0: gather q ----")
        e("s_lshl_b32 s60, s5, 15"); e("s_lshl_b32 s6, s4, 9"); e("s_add_u32 s60, s60, s6")
        if WS_QP: e(f"s_add_u32 s60, s60, {WS_QP:#x}")
        for k in range(1, 4): e(f"s_add_u32 s{60+k}, s60, {k*8192}")
        if self.qdelay: e(f"s_sleep {self.qdelay}")
        else: e("s_waitcnt vmcnt(0)")
        self.poll_masked([f"buffer_load_dwordx4 v[{128+4*k}:{131+4*k}], v58, s[8:11], s{60+k} offen sc1" for k in range(4)],
                         [128 + 4 * k for k in range(4)], "v57", "s53", 72, tagged=True, st1=10)
        self.sum4_halves(128, "v144", "v145")
        e("v_cvt_pk_bf16_f32 v144, v144, v145")
        c("LDS q at 8j+4half")
        e(f"v_add_u32 v61, {L_Q}, v60")
        e("ds_write_b32 v61, v144")
        e("s_mov_b64 exec, 1")
        e(f"ds_add_u32 v3, v4 offset:{S_QRDY}")
        e("s_mov_b64 exec, -1")
        self.stamp(2)
        c("wo tile into T0 (all four waves have consumed the wq tile: their QP parts were gathered)")
        if self.dmaprio is not None: e(f"s_setprio {self.dmaprio}")
        self.srd(40, 24, 8 << 20)
        e(f"s_mov_b32 s7, {L_T0}")
        e("s_branch L_a03_dma")
        L("L_a3_dma")
        self.srd(40, 32, 7 << 20)
        e(f"s_mov_b32 s7, {L_T3}")
        L("L_a03_dma")
        self.dma_voffs("v16", "v17", 2048, "v11", "v12", "s6")
        e("s_lshl_b32 s6, s5, 18"); e("s_lshl_b32 s53, s4, 8"); e("s_add_u32 s6, s6, s53")
        self.tile_dma(40, "v16", "v17", "s6", 2048, "s7", 0, 32, win=self.dmaw)
        L("L_a_bar2")
        if self.dmaprio is not None: e("s_setprio 3")
        c("output element of this lane: n = 4j + 2*bit5 + bit4 within 32-col group; b'=h>>2, col = c*128+(h&3)*32+n")
        e("v_and_b32 v56, 7, v0"); e("v_lshlrev_b32 v56, 2, v56")
        e("v_lshl_add_u32 v56, v5, 1, v56")
        e("v_bfe_u32 v57, v0, 4, 1"); e("v_add_u32 v56, v56, v57")
        e("v_lshlrev_b32 v62, 1, v56")
        e("s_lshr_b32 s6, s5, 2"); e("s_lshl_b32 s6, s6, 11")
        e("s_lshl_b32 s7, s4, 8"); e("s_add_u32 s6, s6, s7")
        e("s_and_b32 s7, s5, 3"); e("s_lshl_b32 s7, s7, 6"); e("s_add_u32 s6, s6, s7")
        e("v_add_u32 v62, s6, v62")
        e("buffer_load_ushort v63, v62, s[12:15], 0 offen")
        c("accumulators for the output partial: v[88:95]")
        for r in range(8): e(f"v_mov_b32 v{88+r}, 0")
        e("s_waitcnt vmcnt(0)")
        self.lds_add1("v3", S_AUXBAR, "v4", "s[6:7]")
        self.lds_wait_ge("v3", S_AUXBAR, 8, "v56", "s6", sleep=4)
        if self.stamps:
            e("s_cmp_lg_u32 s3, 0"); e("s_cbranch_scc1 L_st3"); self.stamp(3); L("L_st3")
        e("s_cmp_ge_u32 s5, 28"); e("s_cbranch_scc1 L_a_ffn_done")
        c("---- gate / up partial GEMMs ----")
        self.frag_reads(L_T1, 96)
        e("s_waitcnt lgkmcnt(0)")
        self.mfmas(96, 64, 80, True)
        self.publish(80, "s47")
        self.frag_reads(L_T2, 96)
        e("s_waitcnt lgkmcnt(0)")
        self.mfmas(96, 64, 80, True)
        self.publish(80, "s50")
        self.frag_reads(L_T3, 96)
        if self.skip == "gp": e("s_branch L_a_ffn_done")
        e("s_cmp_lg_u32 s3, 0"); e("s_cbranch_scc1 L_a_zh")
        c("wave 0: gather g,u -> hh -> publish ZH")
        self.lds_wait_ge("v3", S_PROG, self.gp_trig, "v56", "s6", sleep=16)
        e("s_lshl_b32 s60, s5, 16"); e("s_lshl_b32 s6, s4, 9"); e("s_add_u32 s60, s60, s6"); e(f"s_add_u32 s60, s60, {WS_GP:#x}")
        for k in range(1, 4): e(f"s_add_u32 s{60+k}, s60, {k*16384}")
        self.stamp(12)
        self.poll_masked([f"buffer_load_dwordx4 v[{128+4*k}:{131+4*k}], v59, s[8:11], s{60+k} offen {self.gpmod}" for k in range(4)],
                         [128 + 4 * k for k in range(4)], "v57", "s53", 72, tagged=True, sleep=32)
        self.stamp(13)
        for k in range(4): e(f"s_add_u32 s{60+k}, s{60+k}, 4096")
        self.poll_masked([f"buffer_load_dwordx4 v[{144+4*k}:{147+4*k}], v59, s[8:11], s{60+k} offen {self.gpmod}" for k in range(4)],
                         [144 + 4 * k for k in range(4)], "v57", "s53", 72, tagged=True, sleep=32)
        self.stamp(14)
        self.sum4_halves(128, "v160", "v161")
        self.sum4_halves(144, "v162", "v163")
        for r in range(4): self.bf16r(f"v{160+r}", f"v{160+r}")
        e("v_mul_f32 v160, v160, v162"); e("v_mul_f32 v161, v161, v163")
        e("v_cvt_pk_bf16_f32 v160, v160, v161")
        self.canon("v160", "v161")
        e("v_mov_b32 v161, v160"); e("s_nop 1")
        e("v_permlane32_swap_b32 v160, v161")
        e("s_mov_b32 exec_hi, 0")
        e("buffer_store_dwordx2 v[160:161], v60, s[8:11], s52 offen sc1")
        e("s_mov_b64 exec, -1")
        if self.stamps: e("s_waitcnt vmcnt(0)"); self.stamp(15)
        L("L_a_zh")
        if self.skip == "zh": e("s_branch L_a_ffn_done")
        c("all: gather hh of the group as B operands, down GEMM")
        self.lds_wait_ge("v3", S_PROG, self.zh_trig, "v56", "s6", sleep=16)
        e(f"s_lshl_b32 s60, s5, 11"); e(f"s_add_u32 s60, s60, {WS_ZH:#x}")
        self.poll_masked([f"buffer_load_dwordx4 v[{64+4*k}:{67+4*k}], v27, s[8:11], s60 offen offset:{k*64} sc1" for k in range(4)],
                         [64 + 4 * k for k in range(4)], "v57", "s53", 72, sleep=32)
        e("s_waitcnt lgkmcnt(0)")
        self.mfmas(96, 64, 88, False)
        e("s_nop 7")
        L("L_a_ffn_done")
        if self.stamps:
            e("s_cmp_lg_u32 s3, 0"); e("s_cbranch_scc1 L_st4"); self.stamp(4); L("L_st4")
        c("wo fragments")
        self.frag_reads(L_T0, 96)
        e(f"s_lshl_b32 s60, s5, 11"); e(f"s_add_u32 s60, s60, {WS_ZO:#x}")
        self.lds_wait_ge("v3", S_PROG, NITEMS - 2, "v56", "s6", sleep=16)
        e("s_cmp_lg_u32 s3, 0"); e("s_cbranch_scc1 L_a_late123")
        c("---- wave 0: merge the stream waves' partials ----")
        e("v_lshlrev_b32 v56, 3, v0"); e(f"v_add_u32 v56, {L_PO}, v56")
        e(f"v_mov_b32 v57, {L_PML}")
        self.lds_wait_ge("v3", S_PCNT, 4, "v61", "s6", sleep=0)
        self.stamp(5)
        e("ds_read_b128 v[128:131], v57"); e("ds_read_b128 v[132:135], v57 offset:16")
        for w in range(4): e(f"ds_read_b64 v[{136+2*w}:{137+2*w}], v56 offset:{w*512}")
        e("s_waitcnt lgkmcnt(4)")
        e("v_max3_f32 v144, v128, v130, v132"); e("v_max_f32 v144, v144, v134")
        for w in range(4): e(f"v_sub_f32 v{128+2*w}, v{128+2*w}, v144")
        for w in range(4): e(f"v_exp_f32 v{128+2*w}, v{128+2*w}")
        e("s_nop 0")
        e("v_mul_f32 v145, v128, v129")
        for w in range(1, 4): e(f"v_fmac_f32 v145, v{128+2*w}, v{129+2*w}")
        e("v_rcp_f32 v145, v145")
        e("s_waitcnt lgkmcnt(0)")
        e("v_mul_f32 v146, v128, v136"); e("v_mul_f32 v147, v128, v137")
        for w in range(1, 4):
            e(f"v_fmac_f32 v146, v{128+2*w}, v{136+2*w}"); e(f"v_fmac_f32 v147, v{128+2*w}, v{137+2*w}")
        e("v_mul_f32 v146, v146, v145"); e("v_mul_f32 v147, v147, v145")
        e("v_cvt_pk_bf16_f32 v146, v146, v147")
        self.canon("v146", "v147")
        e("buffer_store_dword v146, v25, s[8:11], s51 offen sc1")
        e("s_branch L_a_zo")
        L("L_a_late123")
        c("waves 1..3 start polling when the local stream is finished")
        self.lds_wait_ge("v3", S_PCNT, 4, "v56", "s6", sleep=1)
        e("s_sleep 4")
        L("L_a_zo")
        self.poll_masked([f"buffer_load_dwordx4 v[{64+4*k}:{67+4*k}], v27, s[8:11], s60 offen offset:{k*64} sc1" for k in range(4)],
                         [64 + 4 * k for k in range(4)], "v57", "s53", 72)
        e("s_waitcnt lgkmcnt(0)")
        self.mfmas(96, 64, 88, False)
        self.publish(88, "s48")
        e("s_cmp_lg_u32 s3, 0"); e("s_cbranch_scc1 L_done")
        self.stamp(6)
        c("---- wave 0: final reduction over the 32 heads' partials ----")
        e("v_lshrrev_b32 v56, 3, v0"); e("v_lshlrev_b32 v56, 12, v56")
        e("v_and_b32 v57, 7, v0"); e("v_lshl_add_u32 v58, v57, 4, v56")
        e("s_lshl_b32 s60, s4, 17"); e("s_lshl_b32 s6, s5, 7"); e("s_add_u32 s60, s60, s6")
        e(f"s_add_u32 s60, s60, {WS_OP:#x}")
        for k in range(1, 4): e(f"s_add_u32 s{60+k}, s60, {k*32768}")
        self.poll_masked([f"buffer_load_dwordx4 v[{128+4*k}:{131+4*k}], v58, s[8:11], s{60+k} offen sc1" for k in range(4)],
                         [128 + 4 * k for k in range(4)], "v57", "s53", 72, tagged=True)
        self.sum4_halves(128, "v144", "v145")
        e("s_nop 1")
        e("v_permlane16_swap_b32 v144, v145")
        e("s_nop 1")
        e("v_add_f32 v144, v144, v145")
        e("v_lshlrev_b32 v63, 16, v63")
        e("s_nop 0")
        e("v_add_f32_dpp v144, v144, v144 row_ror:8 row_mask:0xf bank_mask:0xf")
        e("v_add_f32 v144, v144, v63")
        e("v_cvt_pk_bf16_f32 v144, v144, v144")
        self.srd(40, 34, 16384)
        e("s_mov_b32 exec_lo, 0x00ff00ff"); e("s_mov_b32 exec_hi, 0x00ff00ff")
        e("buffer_store_short v144, v62, s[40:43], 0 offen")
        c("workgroup 0 advances the epoch (every workgroup has read it and used it by now)")
        e("s_cmp_lg_u32 s2, 0"); e("s_cbranch_scc1 L_a_noep")
        e("s_mov_b64 exec, 1")
        e("v_mov_b32 v56, s83"); e(f"v_mov_b32 v57, {WS_EPOCH:#x}")
        e("buffer_store_dword v56, v57, s[8:11], 0 offen")
        L("L_a_noep")
        e("s_mov_b64 exec, -1")
        self.stamp(7)
        e("s_branch L_done")

    def stream(self):
        e, c, L = self.e, self.c, self.L
        NL = 16
        IB = NL * 4096
        NI = (1 << 20) // IB
        assert 2 * NI == NITEMS
        RING = 64
        SP = 24
        S = 40
        ACC = 16
        Q = 12
        vM, vL, vS, vT, vPl, vA = "v56", "v57", "v58", "v59", "v60", "v61"
        vLane, vOff, vH = "v5", "v6", "v7"
        vQa, vPo = "v8", "v9"
        fc = self.lead > 0
        MASK = (1 << 20) - IB
        c("================ stream waves (4..7): pass 1 over K, pass 2 over V ================")
        e("s_sub_u32 s3, s3, 4")
        e(f"v_lshlrev_b32 {vLane}, 4, v0")
        e("s_lshl_b32 s6, s3, 10"); e("s_lshl_b32 s7, s2, 20"); e("s_add_u32 s6, s6, s7")
        e(f"v_add_u32 {vLane}, s6, {vLane}")
        e("s_mov_b32 s6, 0")
        if self.rot & 1: e("s_lshl_b32 s6, s3, 1")
        if self.rot & 2: e("s_lshr_b32 s7, s2, 3"); e("s_add_u32 s6, s6, s7")
        e("s_lshl_b32 s6, s6, 12")
        for i in range(NL):
            e(f"s_and_b32 s{64+i}, s6, {IB-4096:#x}"); e("s_add_u32 s6, s6, 0x1000")
        c("s52 = offset (within the head) of the item being issued; the order is rotated per workgroup")
        if self.irot == 0: e("s_mov_b32 s52, 0")
        else:
            e("s_lshr_b32 s52, s2, 3")
            e(f"s_mul_i32 s52, s52, {IB}"); e(f"s_and_b32 s52, s52, {MASK:#x}")
        e(f"v_add_u32 {vOff}, s52, {vLane}")
        e("s_waitcnt lgkmcnt(0)")
        self.stamp_setup()
        if self.stamps:
            e("s_cmp_lg_u32 s3, 0"); e("s_cbranch_scc1 L_st0"); self.stamp(0); L("L_st0")
        self.srd(8, 18, 1 << 28)
        def issue(i):
            r = RING + i * 4
            e(f"buffer_load_dwordx4 v[{r}:{r+3}], {vOff}, s[8:11], s{64+i} offen nt")
        def issue_seq(n):
            if self.pfw and n >= self.pfw: e(f"s_waitcnt vmcnt({self.pfw-1})")
            issue(n)
        for n in range(self.pre): issue_seq(n)
        e("s_barrier")
        c("constants")
        e("v_and_b32 v10, 15, v0")
        e(f"v_lshlrev_b32 {vQa}, 4, v10"); e(f"v_add_u32 {vQa}, {L_Q}, {vQa}")
        e(f"v_lshlrev_b32 {vPo}, 5, v10"); e("v_lshrrev_b32 v11, 4, v0"); e(f"v_lshl_add_u32 {vPo}, v11, 3, {vPo}")
        e("s_lshl_b32 s6, s3, 9"); e(f"s_add_u32 s6, s6, {L_PO}"); e(f"v_add_u32 {vPo}, s6, {vPo}")
        e("v_and_b32 v10, 2, v0"); e("v_cmp_ne_u32 s[46:47], 0, v10")
        e("v_and_b32 v10, 1, v0"); e("v_cmp_ne_u32 s[44:45], 0, v10")
        e(f"s_mov_b32 s48, {f2u(128 ** -0.5):#x}")
        e(f"s_mov_b32 s49, {f2u(1.4426950408889634):#x}")
        e("s_mov_b32 s53, 0")
        for r in range(8): e(f"v_mov_b32 v{ACC+r}, 0")
        for n in range(self.pre, NL): issue_seq(n)
        if self.pfw:
            e("s_mov_b64 exec, 1"); e(f"ds_add_u32 v3, v4 offset:{S_PFD}"); e("s_mov_b64 exec, -1")
        c("wait for q")
        self.lds_wait_ge("v3", S_QRDY, 1, "v10", "s6", sleep=2)
        e(f"ds_read_b128 v[{Q}:{Q+3}], {vQa}")
        e("s_waitcnt lgkmcnt(0)")
        def top(kpass):
            c("offset of item t+1")
            e(f"s_add_u32 s52, s52, {IB}"); e(f"s_and_b32 s52, s52, {MASK:#x}")
            if kpass:
                e(f"s_cmp_ge_u32 s53, {NI-1}")
                e("s_cselect_b32 s8, s20, s18"); e("s_cselect_b32 s9, s21, s19")
                e(f"v_add_u32 {vOff}, s52, {vLane}")
            else:
                e(f"s_cmp_ge_u32 s53, {NITEMS-1}")
                e(f"s_cselect_b32 s6, {OOB:#x}, s52")
                e(f"v_add_u32 {vOff}, s6, {vLane}")
            if self.stamps:
                e("s_memrealtime s[90:91]"); e("s_waitcnt lgkmcnt(0)")
                e("v_mov_b32 v164, s90"); e("v_mov_b32 v165, s91")
                e("s_lshl_b32 s6, s53, 3"); e(f"s_add_u32 s6, s6, {L_TS}"); e("v_mov_b32 v166, s6")
                e("s_cmp_lg_u32 s3, 0"); lx = self.newlab("Lts"); e(f"s_cbranch_scc1 {lx}")
                e("ds_write_b64 v166, v[164:165]"); L(lx)
            if not self.adv:
                e("v_mov_b32 v10, s53")
                e(f"ds_max_u32 v3, v10 offset:{S_PROG}")
            if fc:
                lchk, lgo = self.newlab("Lfc"), self.newlab("Lfg")
                c("flow control: S_HOLD = 255 - (last item whose successor may be issued); 0 = no limit")
                L(lchk)
                e(f"ds_read_b32 {vH}, v3 offset:{S_HOLD}")
                e("s_waitcnt lgkmcnt(0)")
                e(f"v_readfirstlane_b32 s7, {vH}")
                e("s_nop 0")
                e("s_add_u32 s7, s7, s53")
                e("s_cmp_le_u32 s7, 255"); e(f"s_cbranch_scc1 {lgo}")
                e(f"s_sleep {self.slowsleep}")
                e(f"s_branch {lchk}")
                L(lgo)
            e("s_add_u32 s53, s53, 1")
        def announce(i):
            if self.adv and i == NL - self.adv:
                e("v_mov_b32 v10, s53")
                e(f"ds_max_u32 v3, v10 offset:{S_PROG}")
        def shift():
            for i in range(NI - 1): e(f"v_mov_b32 v{S+i}, v{S+i+1}")
        L("L_s_k")
        top(True)
        shift()
        for i in range(NL):
            r = RING + i * 4
            e(f"s_waitcnt vmcnt({NL-1})")
            e(f"v_dot2_f32_bf16 v{SP+i}, v{r}, v{Q}, 0")
            for j in range(1, 4):
                e(f"v_dot2_f32_bf16 v{SP+i}, v{r+j}, v{Q+j}, v{SP+i}")
            issue(i)
            announce(i)
        c("reduce-scatter over the 16 lanes of a row")
        for i in range(8):
            e(f"v_add_f32_dpp v{SP+i}, v{SP+i}, v{SP+i} row_ror:8 row_mask:0xf bank_mask:0x3")
        for i in range(8):
            e(f"v_add_f32_dpp v{SP+i}, v{SP+8+i}, v{SP+8+i} row_ror:8 row_mask:0xf bank_mask:0xc")
        for i in range(4):
            e(f"v_add_f32_dpp v{SP+i}, v{SP+i}, v{SP+i} row_shl:4 row_mask:0xf bank_mask:0x5")
        for i in range(4):
            e(f"v_add_f32_dpp v{SP+i}, v{SP+4+i}, v{SP+4+i} row_shr:4 row_mask:0xf bank_mask:0xa")
        for i in range(4):
            e(f"v_add_f32_dpp v{SP+i}, v{SP+i}, v{SP+i} quad_perm:[2,3,0,1] row_mask:0xf bank_mask:0xf")
        e(f"v_cndmask_b32 v{SP}, v{SP}, v{SP+2}, s[46:47]")
        e(f"v_cndmask_b32 v{SP+1}, v{SP+1}, v{SP+3}, s[46:47]")
        e("s_nop 0")
        e(f"v_add_f32_dpp v{SP}, v{SP}, v{SP} quad_perm:[1,0,3,2] row_mask:0xf bank_mask:0xf")
        e(f"v_add_f32_dpp v{SP+1}, v{SP+1}, v{SP+1} quad_perm:[1,0,3,2] row_mask:0xf bank_mask:0xf")
        e(f"v_cndmask_b32 {vS}, v{SP}, v{SP+1}, s[44:45]")
        c("lane (g,lam) holds the raw score of load lam, row g")
        self.bf16r(vS, vS)
        e(f"v_mul_f32 {vS}, s48, {vS}")
        self.bf16r(vS, vS)
        e(f"v_mul_f32 v{S+NI-1}, s49, {vS}")
        e(f"s_cmp_lt_u32 s53, {NI}"); e("s_cbranch_scc1 L_s_k")
        c("---- softmax numerators relative to this wave's maximum ----")
        e(f"v_max3_f32 {vM}, v{S}, v{S+1}, v{S+2}")
        for i in range(3, NI - 1, 2): e(f"v_max3_f32 {vM}, {vM}, v{S+i}, v{S+i+1}")
        e(f"v_max_f32 {vM}, {vM}, v{S+NI-1}")
        for sh in (8, 4, 2, 1):
            e("s_nop 1")
            e(f"v_max_f32_dpp {vM}, {vM}, {vM} row_ror:{sh} row_mask:0xf bank_mask:0xf")
        for n in (16, 32):
            e(f"v_mov_b32 {vA}, {vM}"); e("s_nop 1")
            e(f"v_permlane{n}_swap_b32 {vM}, {vA}"); e("s_nop 1")
            e(f"v_max_f32 {vM}, {vM}, {vA}")
        for i in range(NI): e(f"v_sub_f32 v{S+i}, v{S+i}, {vM}")
        for i in range(NI): e(f"v_exp_f32 v{S+i}, v{S+i}")
        e("s_nop 0")
        for i in range(NI): self.bf16r(f"v{S+i}", f"v{S+i}")
        e(f"v_add_f32 {vL}, v{S}, v{S+1}"); e(f"v_add_f32 {vT}, v{S+2}, v{S+3}")
        for i in range(4, NI, 2):
            e(f"v_add_f32 {vL}, {vL}, v{S+i}"); e(f"v_add_f32 {vT}, {vT}, v{S+i+1}")
        e(f"v_add_f32 {vL}, {vL}, {vT}")
        self.red_row(vL); self.red_swap(vL, vA, 16); self.red_swap(vL, vA, 32)
        e("s_lshl_b32 s6, s3, 3"); e(f"s_add_u32 s6, s6, {L_PML}")
        e("v_mov_b32 v10, s6")
        e("s_mov_b64 exec, 1")
        e(f"ds_write_b64 v10, v[56:57]")
        e("s_mov_b64 exec, -1")
        L("L_s_v")
        top(False)
        e(f"v_lshrrev_b32 {vPl}, 16, v{S}")
        e(f"v_mov_b32 {vS}, v{S}")
        shift()
        for i in range(NL):
            r = RING + i * 4
            e(f"s_waitcnt vmcnt({NL-1})")
            for j in range(4):
                e(f"v_dot2c_f32_bf16_dpp v{ACC+2*j}, {vPl}, v{r+j} row_newbcast:{i} row_mask:0xf bank_mask:0xf")
                e(f"v_dot2c_f32_bf16_dpp v{ACC+2*j+1}, {vS}, v{r+j} row_newbcast:{i} row_mask:0xf bank_mask:0xf")
            issue(i)
            announce(i)
        e(f"s_cmp_lt_u32 s53, {NITEMS}"); e("s_cbranch_scc1 L_s_v")
        c("flush: reduce rows, write partial o")
        e("s_nop 2")
        for j in range(4):
            e(f"v_permlane32_swap_b32 v{ACC+j}, v{ACC+4+j}")
        e("s_nop 1")
        for j in range(4):
            e(f"v_add_f32 v{ACC+j}, v{ACC+j}, v{ACC+4+j}")
        e("s_nop 1")
        e(f"v_permlane16_swap_b32 v{ACC}, v{ACC+2}")
        e(f"v_permlane16_swap_b32 v{ACC+1}, v{ACC+3}")
        e("s_nop 1")
        e(f"v_add_f32 v{ACC}, v{ACC}, v{ACC+2}")
        e(f"v_add_f32 v{ACC+1}, v{ACC+1}, v{ACC+3}")
        e(f"ds_write_b64 {vPo}, v[{ACC}:{ACC+1}]")
        e("s_mov_b64 exec, 1")
        e(f"ds_add_u32 v3, v4 offset:{S_PCNT}")
        e("s_mov_b64 exec, -1")
        e("s_waitcnt lgkmcnt(0)")
        if self.stamps:
            e("s_cmp_lg_u32 s3, 0"); e("s_cbranch_scc1 L_done")
            e("v_lshlrev_b32 v166, 3, v0"); e(f"v_add_u32 v167, {L_TS}, v166")
            e("ds_read_b64 v[164:165], v167")
            e("s_lshl_b32 s6, s2, 9"); e(f"s_add_u32 s6, s6, {WS_STAMP + 0x100000:#x}")
            e("s_waitcnt lgkmcnt(0)")
            e("buffer_store_dwordx2 v[164:165], v166, s[84:87], s6 offen")

if __name__ == "__main__":
    import argparse
    ap = argparse.ArgumentParser()
    ap.add_argument("-o", dest="out", default="k.s")
    ap.add_argument("--stamps", action="store_true")
    ap.add_argument("--pf", type=int, default=32)
    ap.add_argument("--pre", type=int, default=4)
    ap.add_argument("--pfw", type=int, default=8)
    ap.add_argument("--dmaw", type=int, default=12)
    ap.add_argument("--dmaprio", type=int, default=None)
    ap.add_argument("--qdelay", type=int, default=0)
    ap.add_argument("--gp_trig", type=int, default=8)
    ap.add_argument("--zh_trig", type=int, default=11)
    ap.add_argument("--lead", type=int, default=2)
    ap.add_argument("--slowsleep", type=int, default=4)
    ap.add_argument("--fcmode", default="both")
    ap.add_argument("--stmod", default="sc1")
    ap.add_argument("--ldmod", default="sc1")
    ap.add_argument("--rdsleep", type=int, default=8)
    ap.add_argument("--rot", type=int, default=0)
    ap.add_argument("--irot", type=int, default=0)
    ap.add_argument("--dbgstamp", action="store_true")
    ap.add_argument("--fstart", type=int, default=1)
    ap.add_argument("--peers", default="oct")
    ap.add_argument("--skip", default="")
    ap.add_argument("--tight", type=int, default=99)
    ap.add_argument("--lead2", type=int, default=1)
    ap.add_argument("--adv", type=int, default=0)
    ap.add_argument("--rdpipe", type=int, default=1)
    ap.add_argument("--fmode", default="poll")
    ap.add_argument("--fper", type=int, default=1)
    ap.add_argument("--rdat", type=int, default=1)
    ap.add_argument("--rtsleep", type=int, default=2)
    ap.add_argument("--npeer", type=int, default=7)
    ap.add_argument("--gpmod", default="sc1")
    a = ap.parse_args()
    open(a.out, "w").write(Gen(a).build())
```

```python
import sys, struct

KN = "parallel_sum__mha_block_cached__glu_gated_bilinear__decode_kernel"

def f2u(f):
    return struct.unpack("<I", struct.pack("<f", f))[0]

WS_QP = 0x000000
WS_ZG = 0x340000
WS_GP = 0x100000
WS_ZO = 0x300000
WS_ZH = 0x310000
WS_OP = 0x400000
WS_ZO2 = 0x320000
WS_OP2 = 0x600000
WS_EPOCH = 0x700000
WS_PR = 0x330000
WS_PR2 = 0x500000
import os
if os.environ.get("LAY") == "1":
    WS_ZO, WS_ZH, WS_ZO2, WS_GP = 0x100000, 0x110000, 0x120000, 0x200000
WS_SIZE = 0x800000
WS_STAMP = 0x20000000

L_T0, L_T1, L_T2, L_T3 = 0, 32768, 65536, 98304
XP = 2064
L_XN = 131072
L_HH = L_XN + 8 * XP
L_Q = L_HH + 8 * 272
L_PO = L_Q + 256
L_RED = L_PO
NSLOT = 2
L_PML = L_PO + NSLOT * 4 * 512
L_SYNC = L_PML + NSLOT * 4 * 8
S_AUXBAR, S_QRDY, S_PROG, S_PFD, S_PCNT, S_HOLD, S_RED, S_HH = 0, 4, 8, 12, 16, 24, 28, 32
L_DESC = L_SYNC + 64
L_TS = L_DESC + 256
L_END = L_TS + 512
LDS_BYTES = (L_END + 255) // 256 * 256

NK = 8
ITEM_BYTES = NK * 4 * 1024
NITEMS = (1 << 20) // ITEM_BYTES
D_VALID, D_SWITCH, D_END = 1, 2, 4
OOB = 0x20000000
SPIN_CAP = 20000
EPOCH_STEP = 0x9E3779B9

class Gen:
    def __init__(self, a):
        self.o = []
        self.lab = 0
        self.__dict__.update(vars(a))
        self.o = []
    def e(self, s):
        self.o.append("    " + s)
    def c(self, s):
        self.o.append("    ; " + s)
    def L(self, name):
        self.o.append(name + ":")
    def newlab(self, p="L"):
        self.lab += 1
        return f"{p}_{self.lab}"
    def nop(self, n):
        if n > 0:
            self.e(f"s_nop {n-1}")

    def srd(self, d, ptr, nbytes):
        e = self.e
        e(f"s_mov_b32 s{d}, s{ptr}"); e(f"s_mov_b32 s{d+1}, s{ptr+1}")
        e(f"s_mov_b32 s{d+2}, {nbytes:#x}"); e(f"s_mov_b32 s{d+3}, 0x20000")

    def lds_wait_ge(self, vaddr, off, target, vt, st, sleep=1):
        e = self.e
        l0, l1 = self.newlab("Lw"), self.newlab("Lwd")
        self.L(l0)
        e(f"ds_read_b32 {vt}, {vaddr} offset:{off}")
        e("s_waitcnt lgkmcnt(0)")
        e(f"v_readfirstlane_b32 {st}, {vt}")
        e("s_nop 0")
        e(f"s_cmp_ge_u32 {st}, {target}")
        e(f"s_cbranch_scc1 {l1}")
        e(f"s_sleep {sleep}")
        e(f"s_branch {l0}")
        self.L(l1)

    def lds_add1(self, vaddr, off, vone, ssave):
        e = self.e
        e(f"s_mov_b64 {ssave}, exec")
        e("s_mov_b64 exec, 1")
        e(f"ds_add_u32 {vaddr}, {vone} offset:{off}")
        e(f"s_mov_b64 exec, {ssave}")

    def stamp(self, idx):
        if self.dbgstamp:
            m = {2: 86, 5: 88, 6: 90, 7: 92}
            if idx in m:
                self.e(f"s_memrealtime s[{m[idx]}:{m[idx]+1}]")
            if idx == 7:
                e = self.e
                e("s_waitcnt lgkmcnt(0)")
                self.srd(56, 36, 256)
                e("s_mov_b64 exec, 1")
                for k, r in enumerate((86, 88, 90, 92)):
                    e(f"s_sub_u32 s6, s{r}, s84"); e("v_mov_b32 v56, s6"); e(f"v_mov_b32 v57, {k*8}")
                    e("buffer_atomic_umax v56, v57, s[56:59], 0 offen sc1")
                    e("s_sub_u32 s6, 100000, s6"); e("v_mov_b32 v58, s6")
                    e("buffer_atomic_umax v58, v57, s[56:59], 0 offen offset:4 sc1")
                    e("s_nop 4")
                e("s_and_b32 s6, s84, 0xffffff"); e("v_mov_b32 v56, s6"); e("v_mov_b32 v57, 32")
                e("buffer_atomic_umax v56, v57, s[56:59], 0 offen sc1")
                e("s_sub_u32 s6, 0x1000000, s6"); e("v_mov_b32 v58, s6")
                e("buffer_atomic_umax v58, v57, s[56:59], 0 offen offset:4 sc1")
            return
        if not self.stamps:
            return
        e = self.e
        e("s_memrealtime s[90:91]")
        e("s_waitcnt lgkmcnt(0)")
        e("v_mov_b32 v164, s90"); e("v_mov_b32 v165, s91")
        e(f"v_mov_b32 v166, {L_TS + 320 + idx * 8}")
        e("ds_write_b64 v166, v[164:165]")
        if idx == 7:
            e("v_lshlrev_b32 v166, 3, v0"); e(f"v_add_u32 v167, {L_TS + 320}, v166")
            e("s_mov_b64 exec, 0xffff")
            e("ds_read_b64 v[164:165], v167")
            e("s_waitcnt lgkmcnt(0)")
            e("buffer_store_dwordx2 v[164:165], v166, s[84:87], s88 offen")
            e("s_mov_b64 exec, -1")

    def bf16r(self, d, s):
        self.e(f"v_cvt_pk_bf16_f32 {d}, 0, {s}")

    def build(self):
        e, c, L = self.e, self.c, self.L
        hdr = []
        hdr.append(f"; @launch grid=(256,1,1) block=({640 if self.lead else 512},1,1) lds={LDS_BYTES}")
        hdr.append('.amdgcn_target "amdgcn-amd-amdhsa--gfx950"')
        hdr += [".text", f".globl {KN}", ".p2align 8", f".type {KN},@function", f"{KN}:"]
        e("s_cmp_ge_u32 s2, 256"); e("s_cbranch_scc1 L_done")
        c("kernarg: s16 x, s18 K, s20 V, s22 wq, s24 wo, s26 Bx, s28 wg, s30 wu, s32 wd, s34 out, s36 dbg, s38 ws")
        e("s_load_dwordx16 s[16:31], s[0:1], 0")
        e("s_load_dwordx8 s[32:39], s[0:1], 64")
        e("v_lshrrev_b32 v1, 6, v0")
        e("v_and_b32 v0, 63, v0")
        e("v_readfirstlane_b32 s3, v1")
        e("s_lshr_b32 s4, s2, 5")
        e("s_and_b32 s5, s2, 31")
        e("v_mov_b32 v2, 0")
        e(f"v_mov_b32 v3, {L_SYNC}")
        e("v_mov_b32 v4, 1")
        if self.lead:
            e("s_cmp_ge_u32 s3, 8"); e("s_cbranch_scc1 L_flow")
        e("s_cmp_ge_u32 s3, 4")
        e("s_cbranch_scc1 L_stream")
        self.aux()
        if self.lead: self.flow2()
        L("L_stream")
        self.stream()
        L("L_done")
        e("s_endpgm")
        nv = 168
        tail = ['.section .rodata,"a"', ".p2align 6", f".amdhsa_kernel {KN}",
                f"  .amdhsa_next_free_vgpr {nv}", "  .amdhsa_next_free_sgpr 96", f"  .amdhsa_accum_offset {nv}",
                "  .amdhsa_group_segment_fixed_size 0", "  .amdhsa_kernarg_size 96", "  .amdhsa_user_sgpr_count 2",
                "  .amdhsa_user_sgpr_kernarg_segment_ptr 1", "  .amdhsa_system_sgpr_workgroup_id_x 1",
                "  .amdhsa_float_denorm_mode_32 3",
                ".end_amdhsa_kernel"]
        return "\n".join(hdr + self.o + tail) + "\n"

    def stamp_setup(self):
        if not self.stamps:
            return
        e = self.e
        self.srd(84, 38, 0x40000000)
        e(f"s_mul_i32 s88, s2, {16*8}"); e(f"s_add_u32 s88, s88, {WS_STAMP:#x}")

    def tile_dma(self, srd, vE, vO, s_org, rowstride, ldsbase, first, count, win=0):
        e = self.e
        for k in range(count):
            i = first + k
            v = vO if (i >> 1) & 1 else vE
            if win and k >= win: e(f"s_waitcnt vmcnt({win-1})")
            e(f"s_mov_b32 m0, {ldsbase}")
            e(f"s_add_u32 {ldsbase}, {ldsbase}, 1024")
            e(f"buffer_load_dwordx4 {v}, s[{srd}:{srd+3}], {s_org} offen nt lds")
            e(f"s_add_u32 {s_org}, {s_org}, {4*rowstride}")

    def ntile_dma(self, srd, v, s_org, rowstride, ldsbase, count, win=0, mod="nt"):
        e = self.e
        for k in range(count):
            if win and k >= win: e(f"s_waitcnt vmcnt({win-1})")
            e(f"s_mov_b32 m0, {ldsbase}")
            e(f"s_add_u32 {ldsbase}, {ldsbase}, 1024")
            e(f"buffer_load_dwordx4 {v}, s[{srd}:{srd+3}], {s_org} offen {mod} lds")
            e(f"s_add_u32 {s_org}, {s_org}, {16*rowstride}")

    def ndma_voff(self, v, rowstride, t0):
        e = self.e
        e(f"v_lshrrev_b32 {t0}, 2, v0"); e(f"v_mul_u32_u24 {t0}, {rowstride}, {t0}")
        e(f"v_and_b32 {v}, 3, v0"); e(f"v_lshl_add_u32 {v}, {v}, 4, {t0}")

    def nfrag_reads(self, va, off, fr):
        e = self.e
        for ks in range(4):
            for nbi in range(2):
                r = fr + (nbi * 4 + ks) * 4
                e(f"ds_read_b64_tr_b16 v[{r}:{r+1}], {va} offset:{off + ks*2048 + nbi*32}")
                e(f"ds_read_b64_tr_b16 v[{r+2}:{r+3}], {va} offset:{off + ks*2048 + nbi*32 + 256}")

    def wave_reduce(self, d, target, l_other, dst=(28, 29, 30, 31)):
        e = self.e
        e("s_nop 7")
        for r in range(4):
            e(f"v_cndmask_b32 v{28+r}, v{d+r}, v{d+4+r}, s[44:45]")
        lz = self.newlab("Lr")
        e(f"s_cmp_eq_u32 s3, 0"); e(f"s_cbranch_scc1 {lz}")
        e("ds_write_b128 v59, v[28:31]")
        e("s_waitcnt vmcnt(0) lgkmcnt(0)")
        self.lds_add1("v3", S_RED, "v4", "s[6:7]")
        e(f"s_branch {l_other}")
        self.L(lz)
        self.lds_wait_ge("v3", S_RED, target, "v56", "s6", sleep=0)
        for w in range(1, 4): e(f"ds_read_b128 v[{128+4*w}:{131+4*w}], v59 offset:{w*1024}")
        e("s_waitcnt lgkmcnt(1)")
        for r in range(4): e(f"v_add_f32 v{28+r}, v{28+r}, v{132+r}")
        e("s_waitcnt lgkmcnt(0)")
        for r in range(4): e(f"v_add_f32 v{136+r}, v{136+r}, v{140+r}")
        for r in range(4): e(f"v_add_f32 v{dst[r]}, v{28+r}, v{136+r}")

    def dma_voffs(self, vE, vO, rowstride, t0, t1, st):
        e = self.e
        e(f"v_lshrrev_b32 {t0}, 4, v0")
        e(f"v_and_b32 {t1}, 15, v0")
        e(f"v_lshlrev_b32 {vE}, 1, {t0}")
        e(f"v_xor_b32 {vE}, {vE}, {t1}")
        e(f"v_lshlrev_b32 {vE}, 4, {vE}")
        e(f"s_mov_b32 {st}, {rowstride}")
        e(f"v_mul_lo_u32 {t0}, {t0}, {st}")
        e(f"v_add_u32 {vE}, {vE}, {t0}")
        e(f"v_xor_b32 {vO}, 128, {vE}")

    def frag_reads(self, tbase, fr):
        e = self.e
        e(f"v_add_u32 v22, {tbase}, v20")
        e(f"v_add_u32 v23, {tbase}, v21")
        for nbi in range(2):
            for ks in range(4):
                r = fr + (nbi * 4 + ks) * 4
                e(f"ds_read_b64_tr_b16 v[{r}:{r+1}], v{22+nbi} offset:{ks*8192}")
                e(f"ds_read_b64_tr_b16 v[{r+2}:{r+3}], v{22+nbi} offset:{ks*8192+1024}")

    def mfmas(self, fr, bop, d, first_zero):
        e = self.e
        for ks in range(4):
            for nbi in range(2):
                r = fr + (nbi * 4 + ks) * 4
                dd = f"v[{d+nbi*4}:{d+nbi*4+3}]"
                cc = "0" if (first_zero and ks == 0) else dd
                e(f"v_mfma_f32_16x16x32_bf16 {dd}, v[{r}:{r+3}], v[{bop+ks*4}:{bop+ks*4+3}], {cc}")

    def publish(self, d, soff, store=True, mod="sc1", d2=None):
        e = self.e
        e("s_nop 7")
        if d2 is not None:
            for r in range(4):
                e(f"v_cndmask_b32 v{72+r}, v{d2+r}, v{d2+4+r}, s[44:45]")
        for r in range(4):
            e(f"v_cndmask_b32 v{28+r}, v{d+r}, v{d+4+r}, s[44:45]")
        if d2 is not None:
            for r in range(4):
                e(f"v_add_f32_dpp v{28+r}, v{72+r}, v{28+r} row_ror:8 row_mask:0xf bank_mask:0xf")
        for r in range(4):
            e(f"v_add_u32 v{28+r}, 0x80, v{28+r}")
        for r in range(4):
            e(f"v_and_or_b32 v{28+r}, v{28+r}, s80, v{12+r}")
        if store:
            e(f"buffer_store_dwordx4 v[28:31], v24, s[8:11], {soff} offen {mod}")
            e("s_nop 1")

    def poll_loads(self, loads, regs, tmp, scnt):
        e = self.e
        l0, l1 = self.newlab("Lp"), self.newlab("Lpd")
        e(f"s_mov_b32 {scnt}, {SPIN_CAP}")
        self.L(l0)
        for s in loads:
            e(s)
        e("s_waitcnt vmcnt(0)")
        regs = list(regs)
        e(f"v_max3_u32 {tmp}, v{regs[0]}, v{regs[1]}, v{regs[2]}")
        rest = regs[3:]
        while len(rest) >= 2:
            e(f"v_max3_u32 {tmp}, {tmp}, v{rest[0]}, v{rest[1]}"); rest = rest[2:]
        if rest:
            e(f"v_max_u32 {tmp}, {tmp}, v{rest[0]}")
        e(f"v_cmp_eq_u32 vcc, -1, {tmp}")
        e(f"s_sub_u32 {scnt}, {scnt}, 1")
        e(f"s_cbranch_scc1 {l1}")
        e(f"s_cbranch_vccnz {l0}")
        self.L(l1)

    def sum4_halves(self, base, out0, out1, src=None):
        e = self.e
        for r in range(16):
            e(f"v_and_b32 v{base+r}, s80, v{(base if src is None else src)+r}")
        for r in range(4):
            e(f"v_add_f32 v{base+r}, v{base+r}, v{base+4+r}")
            e(f"v_add_f32 v{base+8+r}, v{base+8+r}, v{base+12+r}")
        for r in range(4):
            e(f"v_add_f32 v{base+r}, v{base+r}, v{base+8+r}")
        e("s_nop 1")
        e(f"v_permlane32_swap_b32 v{base}, v{base+2}")
        e(f"v_permlane32_swap_b32 v{base+1}, v{base+3}")
        e("s_nop 1")
        e(f"v_add_f32 {out0}, v{base}, v{base+2}")
        e(f"v_add_f32 {out1}, v{base+1}, v{base+3}")

    def canon(self, v, t):
        e = self.e
        e(f"v_cmp_eq_u32 vcc, -1, {v}")
        e(f"v_mov_b32 {t}, 0x7fc07fc0")
        e("s_nop 0")
        e(f"v_cndmask_b32 {v}, {v}, {t}, vcc")

    def red_row(self, v):
        e = self.e
        for sh in (8, 4, 2, 1):
            e("s_nop 1")
            e(f"v_add_f32_dpp {v}, {v}, {v} row_ror:{sh} row_mask:0xf bank_mask:0xf")

    def red_swap(self, v, t, n):
        e = self.e
        e(f"v_mov_b32 {t}, {v}")
        e("s_nop 1")
        e(f"v_permlane{n}_swap_b32 {v}, {t}")
        e("s_nop 1")
        e(f"v_add_f32 {v}, {v}, {t}")

    def ln_chain(self, vmean, vvar):
        e = self.e
        self.bf16r(vmean, vmean)
        self.bf16r(vvar, vvar)
        e(f"v_add_f32 {vvar}, {f2u(1e-5):#x}, {vvar}")
        self.bf16r(vvar, vvar)
        e(f"v_sqrt_f32 {vvar}, {vvar}")
        e("s_nop 0")
        self.bf16r(vvar, vvar)
        e(f"v_rcp_f32 {vvar}, {vvar}")

    def flag_add(self, voff):
        e = self.e
        e("s_mov_b64 exec, 1")
        e(f"buffer_atomic_add v4, {voff}, s[56:59], 0 offen sc1")
        e("s_mov_b64 exec, -1")

    def flag_wait(self, voff, vt, lanes_lo, sleep):
        e = self.e
        l0, l1 = self.newlab("Lf"), self.newlab("Lfd")
        e(f"s_mov_b32 s53, {SPIN_CAP}")
        e(f"s_mov_b32 exec_lo, {lanes_lo}"); e("s_mov_b32 exec_hi, 0")
        self.L(l0)
        e(f"buffer_load_dword {vt}, {voff}, s[56:59], 0 offen sc1")
        e("s_waitcnt vmcnt(0)")
        e(f"v_cmp_gt_u32 vcc, 8, {vt}")
        e("s_sub_u32 s53, s53, 1"); e(f"s_cbranch_scc1 {l1}")
        e(f"s_cbranch_vccz {l1}")
        e(f"s_sleep {sleep}")
        e(f"s_branch {l0}")
        self.L(l1)
        e("s_mov_b64 exec, -1")

    def poll_masked(self, loads, regs, tmp, scnt, sm, tagged=False, sleep=0, tmp2="v56", st1=None, alt=None, pipe=1, pdelay=2, mid=None):
        e = self.e
        n = len(loads)
        l0, l1 = self.newlab("Lp"), self.newlab("Lpd")
        e(f"s_mov_b32 {scnt}, {SPIN_CAP}")
        for k in range(n):
            e(loads[k])
        for p in range(1, pipe):
            e(f"s_sleep {pdelay}")
            for k in range(n):
                e(loads[k])
        if mid: mid()
        if st1 is not None and self.stamps:
            e(f"s_waitcnt vmcnt({n})"); self.stamp(st1)
            e("s_waitcnt vmcnt(0)"); self.stamp(st1 + 1)
        self.L(l0)
        for k in range(n):
            r = regs[k]
            if k == 0: e(f"s_waitcnt vmcnt({n * (pipe - 1)})")
            if tagged == "pair":
                e(f"v_xor_b32 {tmp}, v{r+1}, v19"); e(f"v_xor_b32 {tmp2}, v{r+3}, v19")
                e(f"v_or_b32 {tmp}, {tmp}, {tmp2}")
                e(f"v_cmp_ne_u32 s[{sm+2*k}:{sm+2*k+1}], 0, {tmp}")
            elif tagged:
                e(f"v_perm_b32 {tmp}, v{r+1}, v{r}, s81")
                e(f"v_perm_b32 {tmp2}, v{r+3}, v{r+2}, s82")
                e(f"v_or_b32 {tmp}, {tmp}, {tmp2}")
                e(f"v_cmp_ne_u32 s[{sm+2*k}:{sm+2*k+1}], {tmp}, v19")
            else:
                e(f"v_max3_u32 {tmp}, v{r}, v{r+1}, v{r+2}")
                e(f"v_max_u32 {tmp}, {tmp}, v{r+3}")
                e(f"v_cmp_eq_u32 s[{sm+2*k}:{sm+2*k+1}], -1, {tmp}")
        e(f"s_or_b64 vcc, s[{sm}:{sm+1}], s[{sm+2*(n>1)}:{sm+1+2*(n>1)}]")
        for k in range(2, n):
            e(f"s_or_b64 vcc, vcc, s[{sm+2*k}:{sm+2*k+1}]")
        e(f"s_cbranch_scc0 {l1}")
        e(f"s_sub_u32 {scnt}, {scnt}, 1")
        e(f"s_cbranch_scc1 {l1}")
        if alt:
            sregs, delta, K, late = alt
            la = self.newlab("Lpa")
            self.c("after K rounds: alternate between the two copies")
            e(f"s_cmp_gt_u32 {scnt}, {SPIN_CAP - K}"); e(f"s_cbranch_scc1 {la}")
            for r in sregs:
                if r[0] == "v": e(f"v_xor_b32 {r}, {r}, {delta}")
                else: e(f"s_xor_b32 {r}, {r}, {delta:#x}")
            if late:
                e(f"s_cmp_lg_u32 {scnt}, {SPIN_CAP - K}"); e(f"s_cbranch_scc1 {la}")
                late()
            self.L(la)
        if sleep: e(f"s_sleep {sleep}")
        if pipe > 1:
            e("s_wqm_b64 exec, vcc")
            for k in range(n): e(loads[k])
        for k in range(n if pipe == 1 else 0):
            ls = self.newlab("Lps")
            e(f"s_wqm_b64 exec, s[{sm+2*k}:{sm+2*k+1}]")
            e(f"s_cbranch_execz {ls}")
            e(loads[k])
            self.L(ls)
        e("s_mov_b64 exec, -1")
        e(f"s_branch {l0}")
        self.L(l1)

    def flow2(self):
        e, c, L = self.e, self.c, self.L
        cps = [int(x) for x in self.cps.split(",")]
        mask = sum(1 << u for u in cps)
        L("L_flow")
        c("================ flow-control waves (8, 9) ================")
        e("s_setprio 2")
        e(f"s_mov_b32 s53, {WS_EPOCH:#x}")
        e("v_lshlrev_b32 v25, 2, v0")
        e("s_waitcnt lgkmcnt(0)")
        e("s_load_dword s83, s[38:39], s53")
        self.srd(8, 38, WS_SIZE)
        if self.vwarm:
            c("touch this head's V page early (address translation only; the value is unused)")
            self.srd(12, 20, 1 << 28)
            e("s_lshl_b32 s6, s2, 20")
            e("buffer_load_dword v59, v25, s[12:15], s6 offen")
        e("s_barrier")
        e(f"s_mov_b32 s60, {mask:#x}")
        e("s_waitcnt lgkmcnt(0)")
        e(f"s_add_u32 s83, s83, {EPOCH_STEP:#x}"); e("s_bitset0_b32 s83, 0")
        e("v_mov_b32 v57, s83")
        e("s_cmp_eq_u32 s3, 9"); e("s_cbranch_scc1 L_f_read")
        c("publisher")
        e("s_lshl_b32 s61, s2, 12"); e(f"s_add_u32 s61, s61, {WS_PR2:#x}")
        e("s_mov_b32 exec_hi, 0")
        L("L_f_pub")
        e("s_ff1_i32_b32 s63, s60"); e("s_bitset0_b32 s60, s63")
        e("s_lshl_b32 s62, s63, 7"); e("s_add_u32 s62, s62, s61")
        self.lds_wait_ge("v3", S_PROG, "s63", "v56", "s6", sleep=2)
        e("buffer_store_dword v57, v25, s[8:11], s62 offen " + self.stmod)
        e("s_cmp_lg_u32 s60, 0"); e("s_cbranch_scc1 L_f_pub")
        e("s_endpgm")
        L("L_f_read")
        c("reader: lane j<7 watches workgroup ((id+1+j)&7) of octet (id>>3) + j*j + j + 1")
        e("v_add_u32 v56, s2, v0"); e("v_add_u32 v56, 1, v56"); e("v_and_b32 v56, 7, v56"); e("v_lshlrev_b32 v61, 12, v56")
        e("v_mad_u32_u24 v56, v0, v0, v0"); e("s_lshr_b32 s62, s2, 3"); e("s_add_u32 s62, s62, 1")
        e("v_add_u32 v56, s62, v56"); e("v_and_b32 v56, 31, v56"); e("v_lshl_add_u32 v61, v56, 15, v61")
        e(f"s_mov_b32 s54, {SPIN_CAP}")
        L("L_f_rd")
        e("s_ff1_i32_b32 s63, s60"); e("s_bitset0_b32 s60, s63")
        e(f"s_sub_u32 s6, {256 - self.lead}, s63"); e("v_mov_b32 v58, s6")
        e(f"ds_write_b32 v3, v58 offset:{S_HOLD}")
        e("s_lshl_b32 s62, s63, 7"); e(f"s_add_u32 s62, s62, {WS_PR2:#x}")
        e(f"s_add_u32 s55, s63, {self.rdat}")
        self.lds_wait_ge("v3", S_PROG, "s55", "v56", "s6", sleep=2)
        if self.rdsleep: e(f"s_sleep {self.rdsleep}")
        if self.anyof > 1: e(f"s_mov_b64 exec, {sum(0x7f << (8 * r) for r in range(self.anyof)):#x}")
        else: e(f"s_mov_b64 exec, {(1 << self.npeer) - 1:#x}")
        L("L_f_rt")
        e("buffer_load_dword v59, v61, s[8:11], s62 offen " + self.ldmod)
        e("s_waitcnt vmcnt(0)")
        e("v_cmp_ne_u32 vcc, v59, v57")
        e("s_sub_u32 s54, s54, 1"); e("s_cbranch_scc1 L_f_rdd")
        if self.anyof > 1:
            c("lanes j, j+8, .. watch the same id class: one arrival per class is enough")
            e("s_mov_b32 s6, vcc_lo")
            for r in range(1, self.anyof):
                e(f"s_lshr_b32 s7, vcc_lo, {8*r}"); e("s_and_b32 s6, s6, s7")
            e("s_and_b32 s6, s6, 0x7f")
            e(f"s_mul_i32 exec_lo, s6, {sum(1 << (8 * r) for r in range(self.anyof)):#x}")
        else:
            e("s_and_b64 exec, exec, vcc")
        e("s_cbranch_execz L_f_ok")
        if self.rtsleep: e(f"s_sleep {self.rtsleep}")
        e("s_branch L_f_rt")
        L("L_f_ok")
        e("s_mov_b64 exec, -1")
        e("s_cmp_lg_u32 s60, 0"); e("s_cbranch_scc1 L_f_rd")
        L("L_f_rdd")
        e("s_mov_b64 exec, -1")
        e(f"ds_write_b32 v3, v2 offset:{S_HOLD}")
        e("s_endpgm")

    def aux(self):
        e, c, L = self.e, self.c, self.L
        c("================ aux waves (0..3) ================")
        e("s_setprio 3")
        if self.dbgstamp: e("s_memrealtime s[84:85]")
        c("wave 0 zero-inits sync words and fills the descriptor queue")
        e("s_cmp_lg_u32 s3, 0"); e("s_cbranch_scc1 L_a_noinit")
        e("v_lshlrev_b32 v5, 2, v0")
        e(f"v_add_u32 v5, {L_SYNC}, v5")
        e("v_cmp_gt_u32 vcc, 16, v0")
        e("s_and_saveexec_b64 s[6:7], vcc")
        e("ds_write_b32 v5, v2")
        e("s_mov_b64 exec, s[6:7]")
        L("L_a_noinit")
        c("lane-derived offsets")
        e("v_lshrrev_b32 v5, 5, v0")
        e("v_and_b32 v6, 31, v0")
        e("v_lshlrev_b32 v6, 4, v6")
        e("v_lshl_add_u32 v8, v5, 11, v6")
        self.ndma_voff("v16", 8192, "v11")
        e("v_lshlrev_b32 v25, 2, v0")
        e("v_mov_b32 v28, -1")
        c("exchange slot offsets: s46 QP, s47 ZG, s48 OP, s51 ZO, s58 ZO2, s56 slot this wave cleans")
        e("s_lshl_b32 s6, s5, 3"); e("s_add_u32 s6, s6, s4")
        e(f"s_xor_b32 s7, s6, {self.px << 3}")
        e(f"s_lshl_b32 s46, s7, {10 + self.qexact}")
        assert WS_QP == 0
        e("s_lshl_b32 s47, s7, 9"); e(f"s_add_u32 s47, s47, {WS_ZG:#x}")
        e("s_lshl_b32 s48, s2, 12"); e(f"s_add_u32 s48, s48, {WS_OP:#x}")
        e("s_lshl_b32 s49, s6, 8")
        e(f"s_add_u32 s51, s49, {WS_ZO:#x}")
        e(f"s_add_u32 s58, s49, {WS_ZO2:#x}")
        e("s_add_u32 s57, s47, 256")
        e("s_bitcmp1_b32 s3, 0")
        e("s_cselect_b32 s56, s58, s51"); e("s_cselect_b32 s57, s57, s47")
        e(f"s_xor_b32 s56, s56, {self.px << 11}")
        e("s_bitcmp1_b32 s3, 1")
        e("s_cselect_b32 s56, s57, s56")
        c("wq tile quarter: rows (c&1)*512 + w*128 .. , cols h*128 + (c>>1)*32")
        e("s_and_b32 s54, s4, 1"); e("s_lshl_b32 s54, s54, 2"); e("s_add_u32 s50, s54, s3")
        e("s_lshl_b32 s54, s50, 20"); e("s_lshl_b32 s7, s5, 8"); e(f"s_xor_b32 s7, s7, {self.px << 8}"); e("s_add_u32 s54, s54, s7")
        e("s_lshr_b32 s7, s4, 1"); e("s_lshl_b32 s7, s7, 6"); e("s_add_u32 s54, s54, s7")
        e("s_lshl_b32 s55, s3, 13")
        assert L_T0 == 0
        e("s_lshl_b32 s6, s3, 12")
        e(f"s_mov_b32 s53, {WS_EPOCH:#x}")
        e("s_waitcnt lgkmcnt(0)")
        e("s_load_dword s83, s[38:39], s53")
        self.srd(12, 16, 16384)
        self.srd(40, 22, 8 << 20)
        c("x loads")
        for k in range(4):
            e(f"buffer_load_dwordx4 v[{32+4*k}:{35+4*k}], v8, s[12:15], s6 offen offset:{k*512}")
        if self.diagc & 2:
            self.ndma_voff("v16", 64, "v11")
            e("s_lshl_b32 s54, s2, 2"); e("s_add_u32 s54, s54, s3"); e("s_lshl_b32 s54, s54, 13")
        self.ntile_dma(40, "v16", "s54", 64 if self.diagc & 2 else 8192, "s55", 8, mod=self.qmod)
        self.srd(8, 38, WS_SIZE)
        c("sentinel into the own ZO / ZO2 / ZG slots (complete before this workgroup publishes QP)")
        e("buffer_store_dword v28, v25, s[8:11], s56 offen " + self.clst)
        e("s_barrier")
        self.stamp_setup()
        e("v_and_b32 v9, 15, v0")
        e("v_lshrrev_b32 v11, 4, v0")
        e("v_and_b32 v12, 7, v0")
        c("publish offsets: v10 = b*128 + (lam>>3)*64 + G*16 ; v24 = b*512 + w*128 + (lam>>3)*64 + G*16")
        e("v_bfe_u32 v13, v0, 3, 1"); e("v_lshlrev_b32 v13, 6, v13"); e("v_lshl_add_u32 v13, v11, 4, v13")
        e("v_lshl_add_u32 v10, v12, 7, v13")
        e("v_lshl_add_u32 v24, v12, 9, v13"); e("s_lshl_b32 s6, s3, 7"); e("v_add_u32 v24, s6, v24")
        c("B-operand addresses: v58 xn, v26 hh (LDS), v27 o (global)")
        e(f"v_mul_u32_u24 v58, {XP}, v12"); e("v_lshl_add_u32 v58, v11, 4, v58"); e(f"v_add_u32 v58, {L_XN}, v58")
        e(f"v_mul_u32_u24 v26, 272, v12"); e("v_lshl_add_u32 v26, v11, 4, v26"); e(f"v_add_u32 v26, {L_HH}, v26")
        if self.z2: e("v_lshl_add_u32 v27, v12, 8, v13")
        else: e("v_lshlrev_b32 v27, 8, v12"); e("v_lshl_add_u32 v27, v11, 4, v27")
        c("QP gather offset v60 = (l>>3)*1024 + (l&7)*16 ; q LDS address v61 ; reduction scratch v59 ; v7 = lane*16")
        e("v_lshrrev_b32 v13, 3, v0"); e(f"v_lshlrev_b32 v60, {10 + self.qexact}, v13"); e("v_lshl_add_u32 v60, v12, 4, v60")
        e("v_lshlrev_b32 v61, 6, v11"); e("v_lshl_add_u32 v61, v12, 3, v61"); e(f"v_add_u32 v61, {L_Q}, v61")
        e("v_lshlrev_b32 v7, 4, v0")
        e("s_lshl_b32 s6, s3, 10"); e(f"s_add_u32 s6, s6, {L_RED}"); e("v_add_u32 v59, s6, v7")
        c("tr-read lane addresses: narrow v18 = (8G+r)*64 + cc*8 ; wide v20,v21 = (8G+r)*256 + ((nb^g)*32) + cc*8")
        e("v_bfe_u32 v12, v0, 2, 2")
        e("v_and_b32 v13, 3, v0")
        e("v_lshl_add_u32 v14, v11, 3, v12")
        e("v_lshlrev_b32 v18, 6, v14"); e("v_lshl_add_u32 v18, v13, 3, v18")
        e("v_lshlrev_b32 v14, 8, v14"); e("v_lshl_add_u32 v14, v13, 3, v14")
        e("v_and_b32 v15, 1, v11"); e("v_lshl_or_b32 v15, v15, 2, v12")
        e("s_lshl_b32 s6, s3, 1")
        e("v_xor_b32 v20, s6, v15"); e("v_xor_b32 v21, 1, v20")
        e("v_lshl_add_u32 v20, v20, 5, v14"); e("v_lshl_add_u32 v21, v21, 5, v14")
        e("v_cmp_lt_u32 s[44:45], 7, v9")
        c("s52 = FFN column group of this head group (>= 28: none)")
        e("s_mov_b32 s52, s5")
        if self.oddlight:
            e("s_lshr_b32 s6, s5, 1"); e("s_add_u32 s6, s6, 12")
            e("s_bitcmp1_b32 s5, 0"); e("s_cselect_b32 s6, 31, s6")
            e("s_cmp_ge_u32 s5, 24"); e("s_cselect_b32 s52, s6, s5")
        e("s_mov_b32 s80, 0xffffff00"); e("s_mov_b32 s81, 0x0c0c0400"); e("s_mov_b32 s82, 0x04000c0c")
        c("xn write address v57 = XN + (2w+half)*XP + (l&31)*16")
        e(f"s_mul_i32 s6, s3, {2*XP}"); e(f"s_add_u32 s6, s6, {L_XN}")
        e(f"v_mul_u32_u24 v57, {XP}, v5"); e("v_add3_u32 v57, v57, v6, s6")
        c("---- layernorm: lanes 0-31 row 2w, lanes 32-63 row 2w+1 ----")
        e("s_mov_b32 s6, 0x3f803f80")
        e("v_mov_b32 v52, 0"); e("v_mov_b32 v53, 0")
        e("s_waitcnt vmcnt(9)")
        for k in range(16):
            e(f"v_dot2c_f32_bf16 v{52+(k&1)}, s6, v{32+k}")
        for k in range(16):
            e(f"v_lshlrev_b32 v{96+2*k}, 16, v{32+k}")
            e(f"v_and_b32 v{97+2*k}, 0xffff0000, v{32+k}")
        e("v_add_f32 v52, v52, v53")
        self.red_row("v52"); self.red_swap("v52", "v53", 16)
        e(f"v_mul_f32 v52, {f2u(1.0/1024):#x}, v52")
        e("v_mov_b32 v54, 0"); e("v_mov_b32 v55, 0")
        for k in range(16):
            t = 48 + 2 * (k & 1)
            e(f"v_pk_add_f32 v[{t}:{t+1}], v[{96+2*k}:{97+2*k}], v[52:53] op_sel_hi:[1,0] neg_lo:[0,1] neg_hi:[0,1]")
            e(f"v_pk_fma_f32 v[54:55], v[{t}:{t+1}], v[{t}:{t+1}], v[54:55]")
        e("v_add_f32 v54, v54, v55")
        self.red_row("v54"); self.red_swap("v54", "v55", 16)
        e(f"v_mul_f32 v54, {f2u(1.0/1024):#x}, v54")
        self.ln_chain("v52", "v54")
        for k in range(16):
            e(f"v_pk_add_f32 v[{96+2*k}:{97+2*k}], v[{96+2*k}:{97+2*k}], v[52:53] op_sel_hi:[1,0] neg_lo:[0,1] neg_hi:[0,1]")
        for k in range(32):
            self.bf16r(f"v{96+k}", f"v{96+k}")
        for k in range(16):
            e(f"v_pk_mul_f32 v[{96+2*k}:{97+2*k}], v[{96+2*k}:{97+2*k}], v[54:55] op_sel_hi:[1,0]")
        for k in range(16):
            e(f"v_cvt_pk_bf16_f32 v{32+k}, v{96+2*k}, v{97+2*k}")
            if k & 3 == 3: e(f"ds_write_b128 v57, v[{29+k}:{32+k}] offset:{(k>>2)*512}")
        e("s_waitcnt lgkmcnt(0)")
        self.lds_add1("v3", S_AUXBAR, "v4", "s[6:7]")
        c("launch tag word v19 = epoch + step; v12..v15 = its bytes")
        e(f"s_add_u32 s83, s83, {EPOCH_STEP:#x}"); e("s_bitset0_b32 s83, 0")
        e("v_mov_b32 v19, s83")
        for r in range(4): e(f"v_bfe_u32 v{12+r}, v19, {8*r}, 8")
        if self.qexact:
            for r in range(4): e(f"v_mov_b32 v{33+2*r}, s83")
        e("s_lshl_b32 s6, s50, 8"); e("v_add_u32 v22, s6, v58")
        e("s_lshl_b32 s6, s3, 13"); e("v_add_u32 v23, s6, v18")
        self.lds_wait_ge("v3", S_AUXBAR, 4, "v56", "s6", sleep=0)
        c("---- q partial GEMM ----")
        for ks in range(4):
            e(f"ds_read_b128 v[{64+4*ks}:{67+4*ks}], v22 offset:{ks*64}")
        e("s_waitcnt vmcnt(1)")
        if self.stamps:
            e("s_cmp_lg_u32 s3, 0"); e("s_cbranch_scc1 L_st1"); self.stamp(1); L("L_st1")
        self.nfrag_reads("v23", 0, 96)
        e("s_waitcnt lgkmcnt(0)")
        self.mfmas(96, 64, 80, True)
        if self.qexact:
            self.wave_reduce(80, 3, "L_a123", dst=(32, 34, 36, 38))
            self.stamp(8)
            c("granules {value, tag}")
            e("s_waitcnt vmcnt(0)")
            e("buffer_store_dwordx4 v[32:35], v10, s[8:11], s46 offen sc1")
            e("buffer_store_dwordx4 v[36:39], v10, s[8:11], s46 offen offset:1024 sc1")
            self.stamp(9)
            c("---- wave 0: gather q ----")
            e("s_lshl_b32 s60, s5, 14"); e("s_lshl_b32 s6, s4, 7"); e("s_add_u32 s60, s60, s6")
            e("s_waitcnt vmcnt(0)")
            self.poll_masked([f"buffer_load_dwordx4 v[{128+4*k}:{131+4*k}], v60, s[8:11], s60 offen offset:{k*1024} sc1" for k in range(2)],
                             [128, 132], "v57", "s53", 72, tagged="pair", st1=10, sleep=self.qsleep)
            for r in range(4): e(f"v_add_f32_dpp v{128+2*r}, v{128+2*r}, v{128+2*r} row_ror:8 row_mask:0xf bank_mask:0xf")
            e("v_cvt_pk_bf16_f32 v128, v128, v130"); e("v_cvt_pk_bf16_f32 v129, v132, v134")
        else:
            self.wave_reduce(80, 3, "L_a123")
            self.stamp(8)
            for r in range(4):
                e(f"v_add_u32 v{28+r}, 0x80, v{28+r}")
            for r in range(4):
                e(f"v_and_or_b32 v{28+r}, v{28+r}, s80, v{12+r}")
            e("s_waitcnt vmcnt(0)")
            e("buffer_store_dwordx4 v[28:31], v10, s[8:11], s46 offen sc1")
            self.stamp(9)
            c("---- wave 0: gather q ----")
            e("s_lshl_b32 s60, s5, 13"); e("s_lshl_b32 s6, s4, 7"); e("s_add_u32 s60, s60, s6")
            if self.qdelay: e(f"s_sleep {self.qdelay}")
            else: e("s_waitcnt vmcnt(0)")
            self.poll_masked(["buffer_load_dwordx4 v[128:131], v60, s[8:11], s60 offen sc1"],
                             [128], "v57", "s53", 72, tagged=True, st1=10, sleep=self.qsleep)
            for r in range(4): e(f"v_and_b32 v{128+r}, s80, v{128+r}")
            e("s_nop 0")
            for r in range(4): e(f"v_add_f32_dpp v{128+r}, v{128+r}, v{128+r} row_ror:8 row_mask:0xf bank_mask:0xf")
            e("v_cvt_pk_bf16_f32 v128, v128, v129"); e("v_cvt_pk_bf16_f32 v129, v130, v131")
        e("ds_write_b64 v61, v[128:129]")
        e("s_mov_b64 exec, 1")
        e(f"ds_add_u32 v3, v4 offset:{S_QRDY}")
        e("s_mov_b64 exec, -1")
        self.stamp(2)
        if self.wodef: e("s_branch L_a_bar2")
        c("wo tile into T0 (all four waves have consumed the wq tile)")
        self.srd(40, 24, 8 << 20)
        e(f"s_mov_b32 s7, {L_T0}"); e("s_mov_b32 s59, s5")
        e("s_branch L_a03_dma")
        L("L_a123")
        c("---- waves 1..3: FFN tile DMA (gate-or-up columns, down) ----")
        e("s_cmp_ge_u32 s52, 28"); e("s_cbranch_scc1 L_a_bar2")
        if self.pfw: self.lds_wait_ge("v3", S_PFD, 4, "v56", "s6", sleep=2)
        e("s_cmp_eq_u32 s3, 3"); e("s_cbranch_scc1 " + ("L_a_bar2" if self.dndef else "L_a3_dma"))
        self.ndma_voff("v16", 7168, "v56")
        e("s_cmp_lt_u32 s4, 4")
        e("s_cselect_b32 s40, s28, s30"); e("s_cselect_b32 s41, s29, s31")
        assert L_T1 == 1 << 15 and L_T2 == 2 << 15
        e("s_lshl_b32 s7, s3, 15")
        e(f"s_mov_b32 s42, {7 << 20:#x}"); e("s_mov_b32 s43, 0x20000")
        e("s_sub_u32 s6, s3, 1"); e(f"s_mul_i32 s6, s6, {512*7168}"); e("s_lshl_b32 s53, s52, 8"); e(f"s_xor_b32 s53, s53, {self.px << 8}"); e("s_add_u32 s6, s6, s53")
        e("s_and_b32 s53, s4, 3"); e("s_lshl_b32 s53, s53, 6"); e("s_add_u32 s6, s6, s53")
        if self.diagc & 1:
            self.ndma_voff("v16", 64, "v56")
            e("s_lshl_b32 s6, s52, 2"); e("s_and_b32 s53, s4, 3"); e("s_add_u32 s6, s6, s53"); e("s_lshl_b32 s6, s6, 1")
            e("s_add_u32 s6, s6, s3"); e("s_sub_u32 s6, s6, 1"); e("s_lshl_b32 s6, s6, 15")
        self.ntile_dma(40, "v16", "s6", 64 if self.diagc & 1 else 7168, "s7", 32, win=self.dmaw, mod=self.fmod)
        e("s_branch L_a_bar2")
        L("L_a3_dma")
        self.srd(40, 32, 7 << 20)
        e(f"s_mov_b32 s7, {L_T3}"); e("s_mov_b32 s59, s52")
        L("L_a03_dma")
        self.dma_voffs("v16", "v17", 2048, "v56", "v57", "s6")
        e("s_lshl_b32 s6, s59, 18"); e("s_lshl_b32 s53, s4, 8"); e("s_add_u32 s6, s6, s53")
        self.tile_dma(40, "v16", "v17", "s6", 2048, "s7", 0, 32, win=self.dmaw)
        L("L_a_bar2")
        if self.wodef:
            c("wo: each wave fetches its own 32 columns into its quarter of T0; the first rows now, the rest behind the V stream")
            self.ndma_voff("v17", 2048, "v56")
            self.srd(68, 24, 8 << 20)
            e("s_lshl_b32 s65, s3, 13")
            e("s_lshl_b32 s64, s4, 8"); e("s_lshl_b32 s6, s3, 6"); e("s_add_u32 s64, s64, s6")
            e("s_lshl_b32 s6, s5, 18"); e("s_add_u32 s64, s64, s6")
            if self.woearly:
                e(f"s_waitcnt vmcnt({max(self.dmaw - self.woearly, 0)})")
                self.ntile_dma(68, "v17", "s64", 2048, "s65", self.woearly)
        c("output element of this lane: n = 4j + 2*bit5 + bit4 within 32-col group; b'=h>>2, col = c*128+(h&3)*32+n")
        e("v_and_b32 v56, 7, v0"); e("v_lshlrev_b32 v56, 2, v56")
        e("v_lshl_add_u32 v56, v5, 1, v56")
        e("v_bfe_u32 v57, v0, 4, 1"); e("v_add_u32 v56, v56, v57")
        e("v_lshlrev_b32 v62, 1, v56")
        e("s_lshr_b32 s6, s5, 2"); e("s_lshl_b32 s6, s6, 11")
        e("s_lshl_b32 s7, s4, 8"); e("s_add_u32 s6, s6, s7")
        e("s_and_b32 s7, s5, 3"); e("s_lshl_b32 s7, s7, 6"); e("s_add_u32 s6, s6, s7")
        e("v_add_u32 v62, s6, v62")
        e("buffer_load_ushort v63, v62, s[12:15], 0 offen")
        c("accumulators for the output partial: v[88:95]")
        for r in range(8): e(f"v_mov_b32 v{88+r}, 0")
        e("s_waitcnt vmcnt(0)")
        self.lds_add1("v3", S_AUXBAR, "v4", "s[6:7]")
        self.lds_wait_ge("v3", S_AUXBAR, 8, "v56", "s6", sleep=4)
        if self.stamps:
            e("s_cmp_lg_u32 s3, 0"); e("s_cbranch_scc1 L_st3"); self.stamp(3); L("L_st3")
        e("s_cmp_ge_u32 s52, 28"); e("s_cbranch_scc1 L_a_ffn_done")
        if self.skip == "all": e("s_branch L_a_ffn_done")
        c("---- gate-or-up columns: this wave covers k = 256w .. 256w+255 ----")
        e("s_lshl_b32 s6, s3, 9"); e("v_add_u32 v22, s6, v58")
        e("s_lshl_b32 s6, s3, 14"); e(f"s_add_u32 s6, s6, {L_T1}"); e("v_add_u32 v23, s6, v18")
        for ch in range(2):
            for ks in range(4):
                e(f"ds_read_b128 v[{64+4*ks}:{67+4*ks}], v22 offset:{ch*256 + ks*64}")
            self.nfrag_reads("v23", ch * 8192, 96)
            e("s_waitcnt lgkmcnt(0)")
            self.mfmas(96, 64, 80, ch == 0)
            e("s_nop 7")
        if not self.dndef: self.frag_reads(L_T3, 96)
        self.wave_reduce(80, 6, "L_a_hh")
        e("v_cvt_pk_bf16_f32 v28, v28, v29"); e("v_cvt_pk_bf16_f32 v29, v30, v31")
        self.canon("v28", "v30"); self.canon("v29", "v30")
        e("v_lshrrev_b32 v56, 1, v10")
        e("buffer_store_dwordx2 v[28:29], v56, s[8:11], s47 offen sc1")
        c("wave 0: gather g,u of the group -> hh -> LDS")
        self.lds_wait_ge("v3", S_PROG, self.zh_trig, "v56", "s6", sleep=16)
        e("s_lshl_b32 s60, s5, 12"); e(f"s_add_u32 s60, s60, {WS_ZG:#x}")
        self.stamp(12)
        self.poll_masked([f"buffer_load_dwordx4 v[{128+4*k}:{131+4*k}], v7, s[8:11], s60 offen offset:{k*1024} sc1" for k in range(4)],
                         [128 + 4 * k for k in range(4)], "v57", "s53", 72, sleep=32)
        self.stamp(13)
        for d in range(8):
            e(f"v_lshlrev_b32 v144, 16, v{128+d}"); e(f"v_and_b32 v145, 0xffff0000, v{128+d}")
            e(f"v_lshlrev_b32 v146, 16, v{136+d}"); e(f"v_and_b32 v147, 0xffff0000, v{136+d}")
            e("v_mul_f32 v144, v144, v146"); e("v_mul_f32 v145, v145, v147")
            e(f"v_cvt_pk_bf16_f32 v{128+d}, v144, v145")
        c("HH + b*272 + (2k + half)*64 + (l&3)*16, b = (l>>2)&7")
        e("v_bfe_u32 v56, v0, 2, 3"); e("v_mul_u32_u24 v56, 272, v56"); e("v_lshl_add_u32 v56, v5, 6, v56")
        e("v_and_b32 v57, 3, v0"); e("v_lshl_add_u32 v56, v57, 4, v56"); e(f"v_add_u32 v56, {L_HH}, v56")
        e("ds_write_b128 v56, v[128:131]"); e("ds_write_b128 v56, v[132:135] offset:128")
        e("s_waitcnt lgkmcnt(0)")
        self.lds_add1("v3", S_HH, "v4", "s[6:7]")
        L("L_a_hh")
        self.lds_wait_ge("v3", S_HH, 1, "v56", "s6", sleep=16)
        for ks in range(4):
            e(f"ds_read_b128 v[{32+4*ks}:{35+4*ks}], v26 offset:{ks*64}")
        e("s_waitcnt lgkmcnt(0)")
        if not self.dndef:
            self.mfmas(96, 32, 88, False)
            e("s_nop 7")
        L("L_a_ffn_done")
        if self.stamps:
            e("s_cmp_lg_u32 s3, 0"); e("s_cbranch_scc1 L_st4"); self.stamp(4); L("L_st4")
        c("OP gather: load k, lane group p reads the line of head h ^ (8k+p); offsets v58 + s[16+k]")
        e("v_lshrrev_b32 v56, 3, v0"); e("s_and_b32 s6, s5, 7"); e("v_xor_b32 v56, s6, v56"); e("v_lshlrev_b32 v56, 12, v56")
        e("v_and_b32 v57, 7, v0"); e("v_lshl_add_u32 v58, v57, 4, v56")
        e("s_lshl_b32 s7, s4, 17"); e("s_lshl_b32 s6, s5, 7"); e("s_add_u32 s7, s7, s6")
        e(f"s_add_u32 s7, s7, {WS_OP:#x}")
        e("s_lshr_b32 s6, s5, 3")
        for k in range(4):
            e(f"s_xor_b32 s{16+k}, s6, {k}"); e(f"s_lshl_b32 s{16+k}, s{16+k}, 15"); e(f"s_add_u32 s{16+k}, s{16+k}, s7")
        if self.o2k:
            assert not self.wodef
            e(f"v_mov_b32 v55, {WS_OP2 - WS_OP:#x}"); e("v_cmp_gt_u32 vcc, 8, v0"); e("v_cndmask_b32 v55, 0, v55, vcc")
            e("v_xor_b32 v58, v58, v55")
            e(f"s_add_u32 s65, s48, {WS_OP2 - WS_OP:#x}")
            e("s_and_b32 s66, s5, 3")
            e("s_bitcmp1_b32 s5, 2"); e("s_mov_b32 s67, 0x55555555"); e("s_cselect_b32 s67, 0xaaaaaaaa, s67")
        c("wo fragments")
        if not self.wodef: self.frag_reads(L_T0, 96)
        e(f"s_lshl_b32 s60, s5, 11"); e(f"s_add_u32 s60, s60, {WS_ZO2 if self.ok else WS_ZO:#x}")
        if self.wodef:
            c("late tiles: each wave fetches its own 32 columns of wo (and w_down) behind the last V loads")
            self.ndma_voff("v16", 2048, "v56")
            e("s_lshl_b32 s7, s3, 13"); e("v_add_u32 v23, s7, v18")
            e("s_lshl_b32 s54, s4, 8"); e("s_lshl_b32 s6, s3, 6"); e("s_add_u32 s54, s54, s6")
            e("s_lshl_b32 s55, s52, 18"); e("s_add_u32 s55, s55, s54")
            e("s_lshl_b32 s6, s5, 18"); e("s_add_u32 s54, s54, s6")
            e(f"s_add_u32 s59, s7, {L_T1}")
            if self.wowarm:
                c("touch the tile's page ahead of time (address translation; the value is unused)")
                self.lds_wait_ge("v3", S_PROG, self.wowarm, "v56", "s6", sleep=16)
                self.srd(40, 24, 8 << 20)
                e("s_mov_b64 exec, 1")
                e("buffer_load_dword v49, v16, s[40:43], s54 offen nt")
                if self.dndef:
                    self.srd(40, 32, 7 << 20)
                    e("buffer_load_dword v49, v16, s[40:43], s55 offen nt")
                e("s_mov_b64 exec, -1")
            self.lds_wait_ge("v3", S_PROG, min(self.wo_trig, self.dn_trig, 31) - 1, "v56", "s6", sleep=16)
            if self.dndef:
                e("s_cmp_ge_u32 s52, 28"); e("s_cbranch_scc1 L_a_nodn")
                self.srd(40, 32, 7 << 20)
                self.lds_wait_ge("v3", S_PROG, self.dn_trig, "v56", "s6", sleep=2)
                self.ntile_dma(40, "v16", "s55", 2048, "s59", 8)
                L("L_a_nodn")
            self.srd(40, 24, 8 << 20)
            if self.wo_trig <= 32:
                self.lds_wait_ge("v3", S_PROG, self.wo_trig, "v56", "s6", sleep=2)
                if self.wosleep: e(f"s_sleep {self.wosleep}")
                self.ntile_dma(68, "v17", "s64", 2048, "s65", 8 - self.woearly)
        else:
            self.lds_wait_ge("v3", S_PROG, NITEMS - 2, "v56", "s6", sleep=16)
        def late_frags():
            if self.wodef:
                self.nfrag_reads("v23", 0, 96)
                if self.dndef: self.nfrag_reads("v23", L_T1, 128)
        e("s_cmp_lg_u32 s3, 0"); e("s_cbranch_scc1 L_a_late123")
        c("---- wave 0: merge the stream waves' partials ----")
        e("v_lshlrev_b32 v56, 3, v0"); e(f"v_add_u32 v56, {L_PO}, v56")
        e(f"v_mov_b32 v57, {L_PML}")
        self.lds_wait_ge("v3", S_PCNT, 4, "v61", "s6", sleep=0)
        self.stamp(5)
        e("ds_read_b128 v[128:131], v57"); e("ds_read_b128 v[132:135], v57 offset:16")
        for w in range(4): e(f"ds_read_b64 v[{136+2*w}:{137+2*w}], v56 offset:{w*512}")
        e("s_waitcnt lgkmcnt(4)")
        e("v_max3_f32 v144, v128, v130, v132"); e("v_max_f32 v144, v144, v134")
        for w in range(4): e(f"v_sub_f32 v{128+2*w}, v{128+2*w}, v144")
        for w in range(4): e(f"v_exp_f32 v{128+2*w}, v{128+2*w}")
        e("s_nop 0")
        e("v_mul_f32 v145, v128, v129")
        for w in range(1, 4): e(f"v_fmac_f32 v145, v{128+2*w}, v{129+2*w}")
        e("v_rcp_f32 v145, v145")
        e("s_waitcnt lgkmcnt(0)")
        e("v_mul_f32 v146, v128, v136"); e("v_mul_f32 v147, v128, v137")
        for w in range(1, 4):
            e(f"v_fmac_f32 v146, v{128+2*w}, v{136+2*w}"); e(f"v_fmac_f32 v147, v{128+2*w}, v{137+2*w}")
        e("v_mul_f32 v146, v146, v145"); e("v_mul_f32 v147, v147, v145")
        e("v_cvt_pk_bf16_f32 v48, v146, v147")
        self.canon("v48", "v147")
        if self.ok: e("buffer_store_dword v48, v25, s[8:11], s58 offen")
        else: e("buffer_store_dword v48, v25, s[8:11], s51 offen sc1")
        if self.wodef and self.wo_trig > 32:
            e("s_branch L_a_w33")
            L("L_a_late123")
            self.lds_wait_ge("v3", S_PCNT, self.wo_trig - 32, "v56", "s6", sleep=1)
            if self.wosleep: e(f"s_sleep {self.wosleep}")
            L("L_a_w33")
            self.ntile_dma(68, "v17", "s64", 2048, "s65", 8 - self.woearly)
            e("s_branch L_a_zo")
        else:
            if self.wodef: e("s_waitcnt vmcnt(1)")
            late_frags()
            e("s_branch L_a_zo")
            L("L_a_late123")
            if self.wodef: e("s_waitcnt vmcnt(0)")
            late_frags()
        c("waves 1..3 start polling when the local stream is finished")
        self.lds_wait_ge("v3", S_PCNT, 4, "v56", "s6", sleep=1)
        if self.osleep: e(f"s_sleep {self.osleep}")
        L("L_a_zo")
        def zo_late():
            lz = self.newlab("Lz")
            e(f"s_cmp_lg_u32 s3, 0"); e(f"s_cbranch_scc1 {lz}")
            e("buffer_store_dword v48, v25, s[8:11], s51 offen sc1")
            L(lz)
        def dn_mid():
            if self.wodef and self.wo_trig > 32:
                e("s_waitcnt vmcnt(4)")
                late_frags()
            if not self.dndef: return
            e("s_cmp_ge_u32 s52, 28"); e("s_cbranch_scc1 L_a_nodn2")
            e("s_waitcnt lgkmcnt(0)")
            self.mfmas(128, 32, 88, False)
            L("L_a_nodn2")
        nz = 2 if self.z2 else 4
        self.poll_masked([f"buffer_load_dwordx4 v[{64+4*k}:{67+4*k}], v27, s[8:11], s60 offen offset:{k*256//nz} sc1" for k in range(nz)],
                         [64 + 4 * k for k in range(nz)], "v57", "s53", 72, sleep=self.opsleep, pipe=self.zpipe, pdelay=self.zpd,
                         mid=dn_mid,
                         alt=(["s60"], WS_ZO ^ WS_ZO2, self.ok, zo_late) if self.ok else None)
        if self.ok: zo_late()
        e("s_waitcnt lgkmcnt(0)")
        if self.z2:
            c("columns 0-7 carry the even k-steps, columns 8-15 the odd ones")
            for Lk in range(2):
                for (dd, nbi, ks) in ((80, 1, 2*Lk), (84, 0, 2*Lk+1), (88, 0, 2*Lk), (92, 1, 2*Lk+1)):
                    r = 96 + (nbi * 4 + ks) * 4
                    cc = "0" if (dd < 88 and Lk == 0) else f"v[{dd}:{dd+3}]"
                    e(f"v_mfma_f32_16x16x32_bf16 v[{dd}:{dd+3}], v[{r}:{r+3}], v[{64+4*Lk}:{67+4*Lk}], {cc}")
        else:
            self.mfmas(96, 64, 88, False)
        if self.o2k:
            self.publish(88, "s48", store=False, d2=80 if self.z2 else None)
            c("lines whose reader has the same id class also get a plain-store copy")
            e("s_cmp_lg_u32 s3, s66"); e("s_cbranch_scc1 L_a_noo2")
            e("s_mov_b32 exec_lo, s67"); e("s_mov_b32 exec_hi, s67")
            e("buffer_store_dwordx4 v[28:31], v24, s[8:11], s65 offen")
            e("s_mov_b64 exec, -1")
            L("L_a_noo2")
            e("buffer_store_dwordx4 v[28:31], v24, s[8:11], s48 offen sc1")
        else:
            self.publish(88, "s48", mod=self.opst)
        e(f"s_cmp_lg_u32 s3, {self.fw}"); e("s_cbranch_scc1 L_done")
        self.stamp(6)
        c("---- wave 0: final reduction over the 32 heads' partials ----")
        if self.fsleep > 0: e(f"s_sleep {self.fsleep}")
        if self.fsleep < 0: e("s_waitcnt vmcnt(0)")
        self.poll_masked([f"buffer_load_dwordx4 v[{128+4*k}:{131+4*k}], v58, s[8:11], s{16+k} offen {self.opld}" for k in range(4)],
                         [128 + 4 * k for k in range(4)], "v57", "s53", 72, tagged=True, pipe=self.opipe, pdelay=self.opd, sleep=self.fpsleep,
                         alt=(["v58"], "v55", self.o2k, None) if self.o2k else None)
        self.sum4_halves(96, "v144", "v145", src=128)
        e("s_nop 1")
        e("v_permlane16_swap_b32 v144, v145")
        e("s_nop 1")
        e("v_add_f32 v144, v144, v145")
        e("v_lshlrev_b32 v63, 16, v63")
        e("s_nop 0")
        e("v_add_f32_dpp v144, v144, v144 row_ror:8 row_mask:0xf bank_mask:0xf")
        e("v_add_f32 v144, v144, v63")
        e("v_cvt_pk_bf16_f32 v144, v144, v144")
        self.srd(40, 34, 16384)
        e("s_mov_b32 exec_lo, 0x00ff00ff"); e("s_mov_b32 exec_hi, 0x00ff00ff")
        e("buffer_store_short v144, v62, s[40:43], 0 offen " + self.outst)
        c("workgroup 0 advances the epoch (every workgroup has read it and used it by now)")
        e("s_cmp_lg_u32 s2, 0"); e("s_cbranch_scc1 L_a_noep")
        e("s_mov_b64 exec, 1")
        e("v_mov_b32 v56, s83"); e(f"v_mov_b32 v57, {WS_EPOCH:#x}")
        e("buffer_store_dword v56, v57, s[8:11], 0 offen " + self.outst)
        L("L_a_noep")
        e("s_mov_b64 exec, -1")
        self.stamp(7)
        e("s_branch L_done")

    def stream(self):
        e, c, L = self.e, self.c, self.L
        NL = 16
        IB = NL * 4096
        NI = (1 << 20) // IB
        assert 2 * NI == NITEMS
        RING = 64
        SP = 24
        S = 40
        ACC = 16
        Q = 12
        vM, vL, vS, vT, vPl, vA = "v56", "v57", "v58", "v59", "v60", "v61"
        vLane, vOff, vH = "v5", "v6", "v7"
        vQa, vPo = "v8", "v9"
        fc = self.lead > 0
        MASK = (1 << 20) - IB
        c("================ stream waves (4..7): pass 1 over K, pass 2 over V ================")
        e("s_sub_u32 s3, s3, 4")
        e(f"v_lshlrev_b32 {vLane}, 4, v0")
        e("s_lshl_b32 s6, s3, 10"); e("s_lshl_b32 s7, s2, 20"); e("s_add_u32 s6, s6, s7")
        e(f"v_add_u32 {vLane}, s6, {vLane}")
        e("s_mov_b32 s6, 0")
        if self.rot & 1: e("s_lshl_b32 s6, s3, 1")
        if self.rot & 2: e("s_lshr_b32 s7, s2, 3"); e("s_add_u32 s6, s6, s7")
        e("s_lshl_b32 s6, s6, 12")
        for i in range(NL):
            e(f"s_and_b32 s{64+i}, s6, {IB-4096:#x}"); e("s_add_u32 s6, s6, 0x1000")
            if self.numa:
                e(f"s_and_b32 s7, s{64+i}, 0xe000"); e(f"s_add_u32 s{64+i}, s{64+i}, s7")
        if self.numa:
            gK, gV = [int(x) for x in self.numa.split(",")]
            e("s_getreg_b32 s7, hwreg(HW_REG_XCC_ID)"); e("s_lshr_b32 s7, s7, 2"); e("s_lshr_b32 s6, s2, 1"); e("s_xor_b32 s7, s7, s6")
            e(f"s_xor_b32 s7, s7, {gK}"); e("s_and_b32 s7, s7, 1"); e("s_lshl_b32 s7, s7, 13")
            e(f"v_add_u32 {vLane}, s7, {vLane}"); e(f"v_xor_b32 {vLane}, 0x400000, {vLane}")
        c("s52 = offset (within the head) of the item being issued; the order is rotated per workgroup")
        if self.irot == 0: e("s_mov_b32 s52, 0")
        else:
            e("s_lshr_b32 s52, s2, 3")
            e(f"s_mul_i32 s52, s52, {IB}"); e(f"s_and_b32 s52, s52, {MASK:#x}")
        e(f"v_add_u32 {vOff}, s52, {vLane}")
        e("s_waitcnt lgkmcnt(0)")
        self.stamp_setup()
        if self.stamps:
            e("s_cmp_lg_u32 s3, 0"); e("s_cbranch_scc1 L_st0"); self.stamp(0); L("L_st0")
        self.srd(8, 18, 1 << 28)
        def issue(i):
            r = RING + i * 4
            e(f"buffer_load_dwordx4 v[{r}:{r+3}], {vOff}, s[8:11], s{64+i} offen nt")
        def issue_seq(n):
            if self.pfw and n >= self.pfw: e(f"s_waitcnt vmcnt({self.pfw-1})")
            issue(n)
        for n in range(self.pre): issue_seq(n)
        e("s_barrier")
        c("constants")
        e("v_and_b32 v10, 15, v0")
        e(f"v_lshlrev_b32 {vQa}, 4, v10"); e(f"v_add_u32 {vQa}, {L_Q}, {vQa}")
        e(f"v_lshlrev_b32 {vPo}, 5, v10"); e("v_lshrrev_b32 v11, 4, v0"); e(f"v_lshl_add_u32 {vPo}, v11, 3, {vPo}")
        e("s_lshl_b32 s6, s3, 9"); e(f"s_add_u32 s6, s6, {L_PO}"); e(f"v_add_u32 {vPo}, s6, {vPo}")
        e("v_and_b32 v10, 2, v0"); e("v_cmp_ne_u32 s[46:47], 0, v10")
        e("v_and_b32 v10, 1, v0"); e("v_cmp_ne_u32 s[44:45], 0, v10")
        e(f"s_mov_b32 s48, {f2u(128 ** -0.5):#x}")
        e(f"s_mov_b32 s49, {f2u(1.4426950408889634):#x}")
        e("s_mov_b32 s53, 0")
        for r in range(8): e(f"v_mov_b32 v{ACC+r}, 0")
        for n in range(self.pre, NL): issue_seq(n)
        if self.pfw:
            e("s_mov_b64 exec, 1"); e(f"ds_add_u32 v3, v4 offset:{S_PFD}"); e("s_mov_b64 exec, -1")
        c("wait for q")
        self.lds_wait_ge("v3", S_QRDY, 1, "v10", "s6", sleep=2)
        e(f"ds_read_b128 v[{Q}:{Q+3}], {vQa}")
        e("s_waitcnt lgkmcnt(0)")
        def top(kpass):
            c("offset of item t+1")
            e(f"s_add_u32 s52, s52, {IB * (2 if self.numa else 1)}"); e(f"s_and_b32 s52, s52, {MASK:#x}")
            if self.numa:
                e("s_cselect_b32 s6, 0, 0x400000"); e(f"v_xor_b32 {vLane}, s6, {vLane}")
                if kpass and gK != gV:
                    e(f"s_cmp_eq_u32 s53, {NI-1}"); e("s_cselect_b32 s6, 0x2000, 0"); e(f"v_xor_b32 {vLane}, s6, {vLane}")
            if kpass:
                e(f"s_cmp_ge_u32 s53, {NI-1}")
                e("s_cselect_b32 s8, s20, s18"); e("s_cselect_b32 s9, s21, s19")
                if self.vrot: e(f"s_cselect_b32 s52, {self.vrot * IB:#x}, s52")
                e(f"v_add_u32 {vOff}, s52, {vLane}")
            else:
                e(f"s_cmp_ge_u32 s53, {NITEMS-1}")
                e(f"s_cselect_b32 s6, {OOB:#x}, s52")
                e(f"v_add_u32 {vOff}, s6, {vLane}")
            if self.stamps:
                e("s_memrealtime s[90:91]"); e("s_waitcnt lgkmcnt(0)")
                e("v_mov_b32 v164, s90"); e("v_mov_b32 v165, s91")
                e("s_lshl_b32 s6, s53, 3"); e(f"s_add_u32 s6, s6, {L_TS}"); e("v_mov_b32 v166, s6")
                e("s_cmp_lg_u32 s3, 0"); lx = self.newlab("Lts"); e(f"s_cbranch_scc1 {lx}")
                e("ds_write_b64 v166, v[164:165]"); L(lx)
            if not self.adv:
                e("v_mov_b32 v10, s53")
                e(f"ds_max_u32 v3, v10 offset:{S_PROG}")
            if fc:
                lchk, lgo = self.newlab("Lfc"), self.newlab("Lfg")
                c("flow control: S_HOLD = 255 - (last item whose successor may be issued); 0 = no limit")
                L(lchk)
                e(f"ds_read_b32 {vH}, v3 offset:{S_HOLD}")
                e("s_waitcnt lgkmcnt(0)")
                e(f"v_readfirstlane_b32 s7, {vH}")
                e("s_nop 0")
                e("s_add_u32 s7, s7, s53")
                e("s_cmp_le_u32 s7, 255"); e(f"s_cbranch_scc1 {lgo}")
                e(f"s_sleep {self.slowsleep}")
                e(f"s_branch {lchk}")
                L(lgo)
            e("s_add_u32 s53, s53, 1")
        def announce(i):
            if self.adv and i == NL - self.adv:
                e("v_mov_b32 v10, s53")
                e(f"ds_max_u32 v3, v10 offset:{S_PROG}")
        def shift():
            for i in range(NI - 1): e(f"v_mov_b32 v{S+i}, v{S+i+1}")
        L("L_s_k")
        top(True)
        shift()
        for i in range(NL):
            r = RING + i * 4
            e(f"s_waitcnt vmcnt({NL-1})")
            e(f"v_dot2_f32_bf16 v{SP+i}, v{r}, v{Q}, 0")
            for j in range(1, 4):
                e(f"v_dot2_f32_bf16 v{SP+i}, v{r+j}, v{Q+j}, v{SP+i}")
            issue(i)
            announce(i)
        c("reduce-scatter over the 16 lanes of a row")
        for i in range(8):
            e(f"v_add_f32_dpp v{SP+i}, v{SP+i}, v{SP+i} row_ror:8 row_mask:0xf bank_mask:0x3")
        for i in range(8):
            e(f"v_add_f32_dpp v{SP+i}, v{SP+8+i}, v{SP+8+i} row_ror:8 row_mask:0xf bank_mask:0xc")
        for i in range(4):
            e(f"v_add_f32_dpp v{SP+i}, v{SP+i}, v{SP+i} row_shl:4 row_mask:0xf bank_mask:0x5")
        for i in range(4):
            e(f"v_add_f32_dpp v{SP+i}, v{SP+4+i}, v{SP+4+i} row_shr:4 row_mask:0xf bank_mask:0xa")
        for i in range(4):
            e(f"v_add_f32_dpp v{SP+i}, v{SP+i}, v{SP+i} quad_perm:[2,3,0,1] row_mask:0xf bank_mask:0xf")
        e(f"v_cndmask_b32 v{SP}, v{SP}, v{SP+2}, s[46:47]")
        e(f"v_cndmask_b32 v{SP+1}, v{SP+1}, v{SP+3}, s[46:47]")
        e("s_nop 0")
        e(f"v_add_f32_dpp v{SP}, v{SP}, v{SP} quad_perm:[1,0,3,2] row_mask:0xf bank_mask:0xf")
        e(f"v_add_f32_dpp v{SP+1}, v{SP+1}, v{SP+1} quad_perm:[1,0,3,2] row_mask:0xf bank_mask:0xf")
        e(f"v_cndmask_b32 {vS}, v{SP}, v{SP+1}, s[44:45]")
        c("lane (g,lam) holds the raw score of load lam, row g")
        self.bf16r(vS, vS)
        e(f"v_mul_f32 {vS}, s48, {vS}")
        self.bf16r(vS, vS)
        e(f"v_mul_f32 v{S+NI-1}, s49, {vS}")
        e(f"s_cmp_lt_u32 s53, {NI}"); e("s_cbranch_scc1 L_s_k")
        c("---- softmax numerators relative to this wave's maximum ----")
        e(f"v_max3_f32 {vM}, v{S}, v{S+1}, v{S+2}")
        for i in range(3, NI - 1, 2): e(f"v_max3_f32 {vM}, {vM}, v{S+i}, v{S+i+1}")
        e(f"v_max_f32 {vM}, {vM}, v{S+NI-1}")
        for sh in (8, 4, 2, 1):
            e("s_nop 1")
            e(f"v_max_f32_dpp {vM}, {vM}, {vM} row_ror:{sh} row_mask:0xf bank_mask:0xf")
        for n in (16, 32):
            e(f"v_mov_b32 {vA}, {vM}"); e("s_nop 1")
            e(f"v_permlane{n}_swap_b32 {vM}, {vA}"); e("s_nop 1")
            e(f"v_max_f32 {vM}, {vM}, {vA}")
        for i in range(NI): e(f"v_sub_f32 v{SP+i}, v{S+i}, {vM}")
        for i in range(NI): e(f"v_exp_f32 v{S+i}, v{SP+((i + self.vrot) % NI)}")
        e("s_nop 0")
        for i in range(NI): self.bf16r(f"v{S+i}", f"v{S+i}")
        e(f"v_add_f32 {vL}, v{S}, v{S+1}"); e(f"v_add_f32 {vT}, v{S+2}, v{S+3}")
        for i in range(4, NI, 2):
            e(f"v_add_f32 {vL}, {vL}, v{S+i}"); e(f"v_add_f32 {vT}, {vT}, v{S+i+1}")
        e(f"v_add_f32 {vL}, {vL}, {vT}")
        self.red_row(vL); self.red_swap(vL, vA, 16); self.red_swap(vL, vA, 32)
        e("s_lshl_b32 s6, s3, 3"); e(f"s_add_u32 s6, s6, {L_PML}")
        e("v_mov_b32 v10, s6")
        e("s_mov_b64 exec, 1")
        e(f"ds_write_b64 v10, v[56:57]")
        e("s_mov_b64 exec, -1")
        L("L_s_v")
        top(False)
        e(f"v_lshrrev_b32 {vPl}, 16, v{S}")
        e(f"v_mov_b32 {vS}, v{S}")
        shift()
        for i in range(NL):
            r = RING + i * 4
            e(f"s_waitcnt vmcnt({NL-1})")
            for j in range(self.pvj):
                e(f"v_dot2c_f32_bf16_dpp v{ACC+2*j}, {vPl}, v{r+j} row_newbcast:{i} row_mask:0xf bank_mask:0xf")
                e(f"v_dot2c_f32_bf16_dpp v{ACC+2*j+1}, {vS}, v{r+j} row_newbcast:{i} row_mask:0xf bank_mask:0xf")
            issue(i)
            announce(i)
        e(f"s_cmp_lt_u32 s53, {NITEMS - self.peel}"); e("s_cbranch_scc1 L_s_v")
        if self.peel:
            c("last item: nothing left to issue")
            if self.stamps: top(False)
            e(f"v_lshrrev_b32 {vPl}, 16, v{S}")
            e(f"v_mov_b32 {vS}, v{S}")
            e("s_nop 1")
            for i in range(NL):
                r = RING + i * 4
                e(f"s_waitcnt vmcnt({NL-1-i})")
                for j in range(4):
                    e(f"v_dot2c_f32_bf16_dpp v{ACC+2*j}, {vPl}, v{r+j} row_newbcast:{i} row_mask:0xf bank_mask:0xf")
                    e(f"v_dot2c_f32_bf16_dpp v{ACC+2*j+1}, {vS}, v{r+j} row_newbcast:{i} row_mask:0xf bank_mask:0xf")
        c("flush: reduce rows, write partial o")
        e("s_nop 2")
        for j in range(4):
            e(f"v_permlane32_swap_b32 v{ACC+j}, v{ACC+4+j}")
        e("s_nop 1")
        for j in range(4):
            e(f"v_add_f32 v{ACC+j}, v{ACC+j}, v{ACC+4+j}")
        e("s_nop 1")
        e(f"v_permlane16_swap_b32 v{ACC}, v{ACC+2}")
        e(f"v_permlane16_swap_b32 v{ACC+1}, v{ACC+3}")
        e("s_nop 1")
        e(f"v_add_f32 v{ACC}, v{ACC}, v{ACC+2}")
        e(f"v_add_f32 v{ACC+1}, v{ACC+1}, v{ACC+3}")
        e(f"ds_write_b64 {vPo}, v[{ACC}:{ACC+1}]")
        e("s_mov_b64 exec, 1")
        e(f"ds_add_u32 v3, v4 offset:{S_PCNT}")
        e("s_mov_b64 exec, -1")
        e("s_waitcnt lgkmcnt(0)")
        if self.stamps:
            e("s_cmp_lg_u32 s3, 0"); e("s_cbranch_scc1 L_done")
            e("v_lshlrev_b32 v166, 3, v0"); e(f"v_add_u32 v167, {L_TS}, v166")
            e("ds_read_b64 v[164:165], v167")
            e("s_lshl_b32 s6, s2, 9"); e(f"s_add_u32 s6, s6, {WS_STAMP + 0x100000:#x}")
            e("s_waitcnt lgkmcnt(0)")
            e("buffer_store_dwordx2 v[164:165], v166, s[84:87], s6 offen")

if __name__ == "__main__":
    import argparse
    ap = argparse.ArgumentParser()
    ap.add_argument("-o", dest="out", default="k.s")
    ap.add_argument("--stamps", action="store_true")
    ap.add_argument("--pf", type=int, default=32)
    ap.add_argument("--pre", type=int, default=4)
    ap.add_argument("--pfw", type=int, default=8)
    ap.add_argument("--dmaw", type=int, default=12)
    ap.add_argument("--dmaprio", type=int, default=None)
    ap.add_argument("--qdelay", type=int, default=0)
    ap.add_argument("--gp_trig", type=int, default=3)
    ap.add_argument("--zh_trig", type=int, default=6)
    ap.add_argument("--lead", type=int, default=1)
    ap.add_argument("--slowsleep", type=int, default=4)
    ap.add_argument("--fcmode", default="both")
    ap.add_argument("--stmod", default="sc1")
    ap.add_argument("--ldmod", default="sc1")
    ap.add_argument("--rdsleep", type=int, default=32)
    ap.add_argument("--rot", type=int, default=1)
    ap.add_argument("--irot", type=int, default=0)
    ap.add_argument("--dbgstamp", action="store_true")
    ap.add_argument("--fstart", type=int, default=1)
    ap.add_argument("--peers", default="oct")
    ap.add_argument("--skip", default="")
    ap.add_argument("--tight", type=int, default=99)
    ap.add_argument("--lead2", type=int, default=1)
    ap.add_argument("--adv", type=int, default=2)
    ap.add_argument("--rdpipe", type=int, default=1)
    ap.add_argument("--fmode", default="poll")
    ap.add_argument("--fper", type=int, default=1)
    ap.add_argument("--rdat", type=int, default=0)
    ap.add_argument("--rtsleep", type=int, default=2)
    ap.add_argument("--npeer", type=int, default=7)
    ap.add_argument("--gpmod", default="sc1")
    ap.add_argument("--qk", type=int, default=0)
    ap.add_argument("--ok", type=int, default=16)
    ap.add_argument("--qwarm", type=int, default=0)
    ap.add_argument("--qsleep", type=int, default=0)
    ap.add_argument("--osleep", type=int, default=4)
    ap.add_argument("--opsleep", type=int, default=0)
    ap.add_argument("--gp1", type=int, default=0)
    ap.add_argument("--gpst", default="sc1")
    ap.add_argument("--zhst", default="sc1")
    ap.add_argument("--outst", default="")
    ap.add_argument("--owarm", type=int, default=0)
    ap.add_argument("--vwarm", type=int, default=0)
    ap.add_argument("--qmod", default="nt")
    ap.add_argument("--fmod", default="nt")
    ap.add_argument("--opst", default="sc1")
    ap.add_argument("--opld", default="sc1")
    ap.add_argument("--clst", default="sc1")
    ap.add_argument("--zpipe", type=int, default=1)
    ap.add_argument("--zpd", type=int, default=2)
    ap.add_argument("--opipe", type=int, default=1)
    ap.add_argument("--opd", type=int, default=8)
    ap.add_argument("--anyof", type=int, default=1)
    ap.add_argument("--oddlight", type=int, default=0)
    ap.add_argument("--px", type=int, default=0)
    ap.add_argument("--numa", default="")
    ap.add_argument("--wodef", type=int, default=0)
    ap.add_argument("--dndef", type=int, default=0)
    ap.add_argument("--wo_trig", type=int, default=31)
    ap.add_argument("--dn_trig", type=int, default=31)
    ap.add_argument("--wosleep", type=int, default=0)
    ap.add_argument("--wowarm", type=int, default=0)
    ap.add_argument("--woearly", type=int, default=0)
    ap.add_argument("--pvj", type=int, default=4)
    ap.add_argument("--peel", type=int, default=1)
    ap.add_argument("--qexact", type=int, default=1)
    ap.add_argument("--vrot", type=int, default=0)
    ap.add_argument("--fsleep", type=int, default=0)
    ap.add_argument("--fw", type=int, default=0)
    ap.add_argument("--fpsleep", type=int, default=0)
    ap.add_argument("--o2k", type=int, default=0)
    ap.add_argument("--z2", type=int, default=0)
    ap.add_argument("--diagc", type=int, default=0)
    ap.add_argument("--cps", default="1,5,9,13,17,21,25,27,29")
    a = ap.parse_args()
    open(a.out, "w").write(Gen(a).build())
```

```python
import sys, struct

KN = "parallel_sum__mha_block_cached__glu_gated_bilinear__decode_kernel"

def f2u(f):
    return struct.unpack("<I", struct.pack("<f", f))[0]

WS_QP = 0x000000
WS_ZG = 0x340000
WS_GP = 0x100000
WS_ZO = 0x300000
WS_ZH = 0x310000
WS_OP = 0x400000
WS_ZO2 = 0x320000
WS_OP2 = 0x600000
WS_EPOCH = 0x700000
WS_PR = 0x330000
WS_PR2 = 0x500000
import os
if os.environ.get("LAY") == "1":
    WS_ZO, WS_ZH, WS_ZO2, WS_GP = 0x100000, 0x110000, 0x120000, 0x200000
WS_SIZE = 0x800000
WS_STAMP = 0x20000000

L_T0, L_T1, L_T2, L_T3 = 0, 32768, 65536, 98304
XP = 2064
L_XN = 131072
L_HH = L_XN + 8 * XP
L_Q = L_HH + 8 * 272
L_PO = L_Q + 256
L_RED = L_PO
NSLOT = 2
L_PML = L_PO + NSLOT * 4 * 512
L_SYNC = L_PML + NSLOT * 4 * 8
S_AUXBAR, S_QRDY, S_PROG, S_PFD, S_PCNT, S_HOLD, S_RED, S_HH = 0, 4, 8, 12, 16, 24, 28, 32
L_DESC = L_SYNC + 64
L_TS = L_DESC + 256
L_END = L_TS + 512
LDS_BYTES = (L_END + 255) // 256 * 256

NK = 8
ITEM_BYTES = NK * 4 * 1024
NITEMS = (1 << 20) // ITEM_BYTES
D_VALID, D_SWITCH, D_END = 1, 2, 4
OOB = 0x20000000
SPIN_CAP = 20000
EPOCH_STEP = 0x9E3779B9

class Gen:
    def __init__(self, a):
        self.o = []
        self.lab = 0
        self.__dict__.update(vars(a))
        self.o = []
    def e(self, s):
        self.o.append("    " + s)
    def c(self, s):
        self.o.append("    ; " + s)
    def L(self, name):
        self.o.append(name + ":")
    def newlab(self, p="L"):
        self.lab += 1
        return f"{p}_{self.lab}"
    def nop(self, n):
        if n > 0:
            self.e(f"s_nop {n-1}")

    def srd(self, d, ptr, nbytes):
        e = self.e
        e(f"s_mov_b32 s{d}, s{ptr}"); e(f"s_mov_b32 s{d+1}, s{ptr+1}")
        e(f"s_mov_b32 s{d+2}, {nbytes:#x}"); e(f"s_mov_b32 s{d+3}, 0x20000")

    def lds_wait_ge(self, vaddr, off, target, vt, st, sleep=1):
        e = self.e
        l0, l1 = self.newlab("Lw"), self.newlab("Lwd")
        self.L(l0)
        e(f"ds_read_b32 {vt}, {vaddr} offset:{off}")
        e("s_waitcnt lgkmcnt(0)")
        e(f"v_readfirstlane_b32 {st}, {vt}")
        e("s_nop 0")
        e(f"s_cmp_ge_u32 {st}, {target}")
        e(f"s_cbranch_scc1 {l1}")
        e(f"s_sleep {sleep}")
        e(f"s_branch {l0}")
        self.L(l1)

    def lds_add1(self, vaddr, off, vone, ssave):
        e = self.e
        e(f"s_mov_b64 {ssave}, exec")
        e("s_mov_b64 exec, 1")
        e(f"ds_add_u32 {vaddr}, {vone} offset:{off}")
        e(f"s_mov_b64 exec, {ssave}")

    def stamp(self, idx):
        if self.dbgstamp:
            m = {2: 86, 5: 88, 6: 90, 7: 92}
            if idx in m:
                self.e(f"s_memrealtime s[{m[idx]}:{m[idx]+1}]")
            if idx == 7:
                e = self.e
                e("s_waitcnt lgkmcnt(0)")
                self.srd(56, 36, 256)
                e("s_mov_b64 exec, 1")
                for k, r in enumerate((86, 88, 90, 92)):
                    e(f"s_sub_u32 s6, s{r}, s84"); e("v_mov_b32 v56, s6"); e(f"v_mov_b32 v57, {k*8}")
                    e("buffer_atomic_umax v56, v57, s[56:59], 0 offen sc1")
                    e("s_sub_u32 s6, 100000, s6"); e("v_mov_b32 v58, s6")
                    e("buffer_atomic_umax v58, v57, s[56:59], 0 offen offset:4 sc1")
                    e("s_nop 4")
                e("s_and_b32 s6, s84, 0xffffff"); e("v_mov_b32 v56, s6"); e("v_mov_b32 v57, 32")
                e("buffer_atomic_umax v56, v57, s[56:59], 0 offen sc1")
                e("s_sub_u32 s6, 0x1000000, s6"); e("v_mov_b32 v58, s6")
                e("buffer_atomic_umax v58, v57, s[56:59], 0 offen offset:4 sc1")
            return
        if not self.stamps:
            return
        e = self.e
        e("s_memrealtime s[90:91]")
        e("s_waitcnt lgkmcnt(0)")
        e("v_mov_b32 v164, s90"); e("v_mov_b32 v165, s91")
        e(f"v_mov_b32 v166, {L_TS + 320 + idx * 8}")
        e("ds_write_b64 v166, v[164:165]")
        if idx == 7:
            e("v_lshlrev_b32 v166, 3, v0"); e(f"v_add_u32 v167, {L_TS + 320}, v166")
            e("s_mov_b64 exec, 0xffff")
            e("ds_read_b64 v[164:165], v167")
            e("s_waitcnt lgkmcnt(0)")
            e("buffer_store_dwordx2 v[164:165], v166, s[84:87], s88 offen")
            e("s_mov_b64 exec, -1")

    def bf16r(self, d, s):
        self.e(f"v_cvt_pk_bf16_f32 {d}, 0, {s}")

    def build(self):
        e, c, L = self.e, self.c, self.L
        hdr = []
        hdr.append(f"; @launch grid=(256,1,1) block=({640 if self.lead else 512},1,1) lds={LDS_BYTES}")
        hdr.append('.amdgcn_target "amdgcn-amd-amdhsa--gfx950"')
        hdr += [".text", f".globl {KN}", ".p2align 8", f".type {KN},@function", f"{KN}:"]
        e("s_cmp_ge_u32 s2, 256"); e("s_cbranch_scc1 L_done")
        c("kernarg: s16 x, s18 K, s20 V, s22 wq, s24 wo, s26 Bx, s28 wg, s30 wu, s32 wd, s34 out, s36 dbg, s38 ws")
        e("s_load_dwordx16 s[16:31], s[0:1], 0")
        e("s_load_dwordx8 s[32:39], s[0:1], 64")
        e("v_lshrrev_b32 v1, 6, v0")
        e("v_and_b32 v0, 63, v0")
        e("v_readfirstlane_b32 s3, v1")
        e("s_lshr_b32 s4, s2, 5")
        e("s_and_b32 s5, s2, 31")
        e("v_mov_b32 v2, 0")
        e(f"v_mov_b32 v3, {L_SYNC}")
        e("v_mov_b32 v4, 1")
        if self.lead:
            e("s_cmp_ge_u32 s3, 8"); e("s_cbranch_scc1 L_flow")
        e("s_cmp_ge_u32 s3, 4")
        e("s_cbranch_scc1 L_stream")
        self.aux()
        if self.lead: self.flow2()
        L("L_stream")
        self.stream()
        L("L_done")
        e("s_endpgm")
        nv = 168
        tail = ['.section .rodata,"a"', ".p2align 6", f".amdhsa_kernel {KN}",
                f"  .amdhsa_next_free_vgpr {nv}", "  .amdhsa_next_free_sgpr 96", f"  .amdhsa_accum_offset {nv}",
                "  .amdhsa_group_segment_fixed_size 0", "  .amdhsa_kernarg_size 96", "  .amdhsa_user_sgpr_count 2",
                "  .amdhsa_user_sgpr_kernarg_segment_ptr 1", "  .amdhsa_system_sgpr_workgroup_id_x 1",
                "  .amdhsa_float_denorm_mode_32 3",
                ".end_amdhsa_kernel"]
        return "\n".join(hdr + self.o + tail) + "\n"

    def stamp_setup(self):
        if not self.stamps:
            return
        e = self.e
        self.srd(84, 38, 0x40000000)
        e(f"s_mul_i32 s88, s2, {16*8}"); e(f"s_add_u32 s88, s88, {WS_STAMP:#x}")

    def tile_dma(self, srd, vE, vO, s_org, rowstride, ldsbase, first, count, win=0):
        e = self.e
        for k in range(count):
            i = first + k
            v = vO if (i >> 1) & 1 else vE
            if win and k >= win: e(f"s_waitcnt vmcnt({win-1})")
            e(f"s_mov_b32 m0, {ldsbase}")
            e(f"s_add_u32 {ldsbase}, {ldsbase}, 1024")
            e(f"buffer_load_dwordx4 {v}, s[{srd}:{srd+3}], {s_org} offen nt lds")
            e(f"s_add_u32 {s_org}, {s_org}, {4*rowstride}")

    def ntile_dma(self, srd, v, s_org, rowstride, ldsbase, count, win=0, mod="nt"):
        e = self.e
        for k in range(count):
            if win and k >= win: e(f"s_waitcnt vmcnt({win-1})")
            e(f"s_mov_b32 m0, {ldsbase}")
            e(f"s_add_u32 {ldsbase}, {ldsbase}, 1024")
            e(f"buffer_load_dwordx4 {v}, s[{srd}:{srd+3}], {s_org} offen {mod} lds")
            e(f"s_add_u32 {s_org}, {s_org}, {16*rowstride}")

    def ndma_voff(self, v, rowstride, t0):
        e = self.e
        e(f"v_lshrrev_b32 {t0}, 2, v0"); e(f"v_mul_u32_u24 {t0}, {rowstride}, {t0}")
        e(f"v_and_b32 {v}, 3, v0"); e(f"v_lshl_add_u32 {v}, {v}, 4, {t0}")

    def nfrag_reads(self, va, off, fr):
        e = self.e
        for ks in range(4):
            for nbi in range(2):
                r = fr + (nbi * 4 + ks) * 4
                e(f"ds_read_b64_tr_b16 v[{r}:{r+1}], {va} offset:{off + ks*2048 + nbi*32}")
                e(f"ds_read_b64_tr_b16 v[{r+2}:{r+3}], {va} offset:{off + ks*2048 + nbi*32 + 256}")

    def wave_reduce(self, d, target, l_other, dst=(28, 29, 30, 31)):
        e = self.e
        e("s_nop 7")
        for r in range(4):
            e(f"v_cndmask_b32 v{28+r}, v{d+r}, v{d+4+r}, s[44:45]")
        lz = self.newlab("Lr")
        e(f"s_cmp_eq_u32 s3, 0"); e(f"s_cbranch_scc1 {lz}")
        e("ds_write_b128 v59, v[28:31]")
        e("s_waitcnt vmcnt(0) lgkmcnt(0)")
        self.lds_add1("v3", S_RED, "v4", "s[6:7]")
        e(f"s_branch {l_other}")
        self.L(lz)
        self.lds_wait_ge("v3", S_RED, target, "v56", "s6", sleep=0)
        for w in range(1, 4): e(f"ds_read_b128 v[{128+4*w}:{131+4*w}], v59 offset:{w*1024}")
        e("s_waitcnt lgkmcnt(1)")
        for r in range(4): e(f"v_add_f32 v{28+r}, v{28+r}, v{132+r}")
        e("s_waitcnt lgkmcnt(0)")
        for r in range(4): e(f"v_add_f32 v{136+r}, v{136+r}, v{140+r}")
        for r in range(4): e(f"v_add_f32 v{dst[r]}, v{28+r}, v{136+r}")

    def dma_voffs(self, vE, vO, rowstride, t0, t1, st):
        e = self.e
        e(f"v_lshrrev_b32 {t0}, 4, v0")
        e(f"v_and_b32 {t1}, 15, v0")
        e(f"v_lshlrev_b32 {vE}, 1, {t0}")
        e(f"v_xor_b32 {vE}, {vE}, {t1}")
        e(f"v_lshlrev_b32 {vE}, 4, {vE}")
        e(f"s_mov_b32 {st}, {rowstride}")
        e(f"v_mul_lo_u32 {t0}, {t0}, {st}")
        e(f"v_add_u32 {vE}, {vE}, {t0}")
        e(f"v_xor_b32 {vO}, 128, {vE}")

    def frag_reads(self, tbase, fr):
        e = self.e
        e(f"v_add_u32 v22, {tbase}, v20")
        e(f"v_add_u32 v23, {tbase}, v21")
        for nbi in range(2):
            for ks in range(4):
                r = fr + (nbi * 4 + ks) * 4
                e(f"ds_read_b64_tr_b16 v[{r}:{r+1}], v{22+nbi} offset:{ks*8192}")
                e(f"ds_read_b64_tr_b16 v[{r+2}:{r+3}], v{22+nbi} offset:{ks*8192+1024}")

    def mfmas(self, fr, bop, d, first_zero):
        e = self.e
        for ks in range(4):
            for nbi in range(2):
                r = fr + (nbi * 4 + ks) * 4
                dd = f"v[{d+nbi*4}:{d+nbi*4+3}]"
                cc = "0" if (first_zero and ks == 0) else dd
                e(f"v_mfma_f32_16x16x32_bf16 {dd}, v[{r}:{r+3}], v[{bop+ks*4}:{bop+ks*4+3}], {cc}")

    def publish(self, d, soff, store=True, mod="sc1", d2=None):
        e = self.e
        e("s_nop 7")
        if d2 is not None:
            for r in range(4):
                e(f"v_cndmask_b32 v{72+r}, v{d2+r}, v{d2+4+r}, s[44:45]")
        for r in range(4):
            e(f"v_cndmask_b32 v{28+r}, v{d+r}, v{d+4+r}, s[44:45]")
        if d2 is not None:
            for r in range(4):
                e(f"v_add_f32_dpp v{28+r}, v{72+r}, v{28+r} row_ror:8 row_mask:0xf bank_mask:0xf")
        for r in range(4):
            e(f"v_add_u32 v{28+r}, 0x80, v{28+r}")
        for r in range(4):
            e(f"v_and_or_b32 v{28+r}, v{28+r}, s80, v{12+r}")
        if store:
            e(f"buffer_store_dwordx4 v[28:31], v24, s[8:11], {soff} offen {mod}")
            e("s_nop 1")

    def poll_loads(self, loads, regs, tmp, scnt):
        e = self.e
        l0, l1 = self.newlab("Lp"), self.newlab("Lpd")
        e(f"s_mov_b32 {scnt}, {SPIN_CAP}")
        self.L(l0)
        for s in loads:
            e(s)
        e("s_waitcnt vmcnt(0)")
        regs = list(regs)
        e(f"v_max3_u32 {tmp}, v{regs[0]}, v{regs[1]}, v{regs[2]}")
        rest = regs[3:]
        while len(rest) >= 2:
            e(f"v_max3_u32 {tmp}, {tmp}, v{rest[0]}, v{rest[1]}"); rest = rest[2:]
        if rest:
            e(f"v_max_u32 {tmp}, {tmp}, v{rest[0]}")
        e(f"v_cmp_eq_u32 vcc, -1, {tmp}")
        e(f"s_sub_u32 {scnt}, {scnt}, 1")
        e(f"s_cbranch_scc1 {l1}")
        e(f"s_cbranch_vccnz {l0}")
        self.L(l1)

    def sum4_halves(self, base, out0, out1, src=None):
        e = self.e
        for r in range(16):
            e(f"v_and_b32 v{base+r}, s80, v{(base if src is None else src)+r}")
        for r in range(4):
            e(f"v_add_f32 v{base+r}, v{base+r}, v{base+4+r}")
            e(f"v_add_f32 v{base+8+r}, v{base+8+r}, v{base+12+r}")
        for r in range(4):
            e(f"v_add_f32 v{base+r}, v{base+r}, v{base+8+r}")
        e("s_nop 1")
        e(f"v_permlane32_swap_b32 v{base}, v{base+2}")
        e(f"v_permlane32_swap_b32 v{base+1}, v{base+3}")
        e("s_nop 1")
        e(f"v_add_f32 {out0}, v{base}, v{base+2}")
        e(f"v_add_f32 {out1}, v{base+1}, v{base+3}")

    def canon(self, v, t):
        e = self.e
        e(f"v_cmp_eq_u32 vcc, -1, {v}")
        e(f"v_mov_b32 {t}, 0x7fc07fc0")
        e("s_nop 0")
        e(f"v_cndmask_b32 {v}, {v}, {t}, vcc")

    def red_row(self, v):
        e = self.e
        for sh in (8, 4, 2, 1):
            e("s_nop 1")
            e(f"v_add_f32_dpp {v}, {v}, {v} row_ror:{sh} row_mask:0xf bank_mask:0xf")

    def red_swap(self, v, t, n):
        e = self.e
        e(f"v_mov_b32 {t}, {v}")
        e("s_nop 1")
        e(f"v_permlane{n}_swap_b32 {v}, {t}")
        e("s_nop 1")
        e(f"v_add_f32 {v}, {v}, {t}")

    def ln_chain(self, vmean, vvar):
        e = self.e
        self.bf16r(vmean, vmean)
        self.bf16r(vvar, vvar)
        e(f"v_add_f32 {vvar}, {f2u(1e-5):#x}, {vvar}")
        self.bf16r(vvar, vvar)
        e(f"v_sqrt_f32 {vvar}, {vvar}")
        e("s_nop 0")
        self.bf16r(vvar, vvar)
        e(f"v_rcp_f32 {vvar}, {vvar}")

    def flag_add(self, voff):
        e = self.e
        e("s_mov_b64 exec, 1")
        e(f"buffer_atomic_add v4, {voff}, s[56:59], 0 offen sc1")
        e("s_mov_b64 exec, -1")

    def flag_wait(self, voff, vt, lanes_lo, sleep):
        e = self.e
        l0, l1 = self.newlab("Lf"), self.newlab("Lfd")
        e(f"s_mov_b32 s53, {SPIN_CAP}")
        e(f"s_mov_b32 exec_lo, {lanes_lo}"); e("s_mov_b32 exec_hi, 0")
        self.L(l0)
        e(f"buffer_load_dword {vt}, {voff}, s[56:59], 0 offen sc1")
        e("s_waitcnt vmcnt(0)")
        e(f"v_cmp_gt_u32 vcc, 8, {vt}")
        e("s_sub_u32 s53, s53, 1"); e(f"s_cbranch_scc1 {l1}")
        e(f"s_cbranch_vccz {l1}")
        e(f"s_sleep {sleep}")
        e(f"s_branch {l0}")
        self.L(l1)
        e("s_mov_b64 exec, -1")

    def poll_masked(self, loads, regs, tmp, scnt, sm, tagged=False, sleep=0, tmp2="v56", st1=None, alt=None, pipe=1, pdelay=2, mid=None):
        e = self.e
        n = len(loads)
        l0, l1 = self.newlab("Lp"), self.newlab("Lpd")
        e(f"s_mov_b32 {scnt}, {SPIN_CAP}")
        for k in range(n):
            e(loads[k])
        for p in range(1, pipe):
            e(f"s_sleep {pdelay}")
            for k in range(n):
                e(loads[k])
        if mid: mid()
        if st1 is not None and self.stamps:
            e(f"s_waitcnt vmcnt({n})"); self.stamp(st1)
            e("s_waitcnt vmcnt(0)"); self.stamp(st1 + 1)
        self.L(l0)
        for k in range(n):
            r = regs[k]
            if k == 0: e(f"s_waitcnt vmcnt({n * (pipe - 1)})")
            if tagged == "pair":
                e(f"v_xor_b32 {tmp}, v{r+1}, v19"); e(f"v_xor_b32 {tmp2}, v{r+3}, v19")
                e(f"v_or_b32 {tmp}, {tmp}, {tmp2}")
                e(f"v_cmp_ne_u32 s[{sm+2*k}:{sm+2*k+1}], 0, {tmp}")
            elif tagged:
                e(f"v_perm_b32 {tmp}, v{r+1}, v{r}, s81")
                e(f"v_perm_b32 {tmp2}, v{r+3}, v{r+2}, s82")
                e(f"v_or_b32 {tmp}, {tmp}, {tmp2}")
                e(f"v_cmp_ne_u32 s[{sm+2*k}:{sm+2*k+1}], {tmp}, v19")
            else:
                e(f"v_max3_u32 {tmp}, v{r}, v{r+1}, v{r+2}")
                e(f"v_max_u32 {tmp}, {tmp}, v{r+3}")
                e(f"v_cmp_eq_u32 s[{sm+2*k}:{sm+2*k+1}], -1, {tmp}")
        e(f"s_or_b64 vcc, s[{sm}:{sm+1}], s[{sm+2*(n>1)}:{sm+1+2*(n>1)}]")
        for k in range(2, n):
            e(f"s_or_b64 vcc, vcc, s[{sm+2*k}:{sm+2*k+1}]")
        e(f"s_cbranch_scc0 {l1}")
        e(f"s_sub_u32 {scnt}, {scnt}, 1")
        e(f"s_cbranch_scc1 {l1}")
        if alt:
            sregs, delta, K, late = alt
            la = self.newlab("Lpa")
            self.c("after K rounds: alternate between the two copies")
            e(f"s_cmp_gt_u32 {scnt}, {SPIN_CAP - K}"); e(f"s_cbranch_scc1 {la}")
            for r in sregs:
                if r[0] == "v": e(f"v_xor_b32 {r}, {r}, {delta}")
                else: e(f"s_xor_b32 {r}, {r}, {delta:#x}")
            if late:
                e(f"s_cmp_lg_u32 {scnt}, {SPIN_CAP - K}"); e(f"s_cbranch_scc1 {la}")
                late()
            self.L(la)
        if sleep: e(f"s_sleep {sleep}")
        if pipe > 1:
            e("s_wqm_b64 exec, vcc")
            for k in range(n): e(loads[k])
        for k in range(n if pipe == 1 else 0):
            ls = self.newlab("Lps")
            e(f"s_wqm_b64 exec, s[{sm+2*k}:{sm+2*k+1}]")
            e(f"s_cbranch_execz {ls}")
            e(loads[k])
            self.L(ls)
        e("s_mov_b64 exec, -1")
        e(f"s_branch {l0}")
        self.L(l1)

    def flow2(self):
        e, c, L = self.e, self.c, self.L
        cps = [int(x) for x in self.cps.split(",")]
        mask = sum(1 << u for u in cps)
        L("L_flow")
        c("================ flow-control waves (8, 9) ================")
        e("s_setprio 2")
        e(f"s_mov_b32 s53, {WS_EPOCH:#x}")
        e("v_lshlrev_b32 v25, 2, v0")
        e("s_waitcnt lgkmcnt(0)")
        e("s_load_dword s83, s[38:39], s53")
        self.srd(8, 38, WS_SIZE)
        if self.vwarm:
            c("touch this head's V page early (address translation only; the value is unused)")
            self.srd(12, 20, 1 << 28)
            e("s_lshl_b32 s6, s2, 20")
            e("buffer_load_dword v59, v25, s[12:15], s6 offen")
        e("s_barrier")
        e(f"s_mov_b32 s60, {mask:#x}")
        e("s_waitcnt lgkmcnt(0)")
        e(f"s_add_u32 s83, s83, {EPOCH_STEP:#x}"); e("s_bitset0_b32 s83, 0")
        e("v_mov_b32 v57, s83")
        e("s_cmp_eq_u32 s3, 9"); e("s_cbranch_scc1 L_f_read")
        c("publisher")
        e("s_lshl_b32 s61, s2, 12"); e(f"s_add_u32 s61, s61, {WS_PR2:#x}")
        e("s_mov_b32 exec_hi, 0")
        L("L_f_pub")
        e("s_ff1_i32_b32 s63, s60"); e("s_bitset0_b32 s60, s63")
        e("s_lshl_b32 s62, s63, 7"); e("s_add_u32 s62, s62, s61")
        self.lds_wait_ge("v3", S_PROG, "s63", "v56", "s6", sleep=2)
        e("buffer_store_dword v57, v25, s[8:11], s62 offen " + self.stmod)
        e("s_cmp_lg_u32 s60, 0"); e("s_cbranch_scc1 L_f_pub")
        e("s_endpgm")
        L("L_f_read")
        c("reader: lane j<7 watches workgroup ((id+1+j)&7) of octet (id>>3) + j*j + j + 1")
        e("v_add_u32 v56, s2, v0"); e("v_add_u32 v56, 1, v56"); e("v_and_b32 v56, 7, v56"); e("v_lshlrev_b32 v61, 12, v56")
        e("v_mad_u32_u24 v56, v0, v0, v0"); e("s_lshr_b32 s62, s2, 3"); e("s_add_u32 s62, s62, 1")
        e("v_add_u32 v56, s62, v56"); e("v_and_b32 v56, 31, v56"); e("v_lshl_add_u32 v61, v56, 15, v61")
        e(f"s_mov_b32 s54, {SPIN_CAP}")
        L("L_f_rd")
        e("s_ff1_i32_b32 s63, s60"); e("s_bitset0_b32 s60, s63")
        e(f"s_sub_u32 s6, {256 - self.lead}, s63"); e("v_mov_b32 v58, s6")
        e(f"ds_write_b32 v3, v58 offset:{S_HOLD}")
        e("s_lshl_b32 s62, s63, 7"); e(f"s_add_u32 s62, s62, {WS_PR2:#x}")
        e(f"s_add_u32 s55, s63, {self.rdat}")
        self.lds_wait_ge("v3", S_PROG, "s55", "v56", "s6", sleep=2)
        if self.rdsleep: e(f"s_sleep {self.rdsleep}")
        if self.anyof > 1: e(f"s_mov_b64 exec, {sum(0x7f << (8 * r) for r in range(self.anyof)):#x}")
        else: e(f"s_mov_b64 exec, {(1 << self.npeer) - 1:#x}")
        L("L_f_rt")
        e("buffer_load_dword v59, v61, s[8:11], s62 offen " + self.ldmod)
        e("s_waitcnt vmcnt(0)")
        e("v_cmp_ne_u32 vcc, v59, v57")
        e("s_sub_u32 s54, s54, 1"); e("s_cbranch_scc1 L_f_rdd")
        if self.anyof > 1:
            c("lanes j, j+8, .. watch the same id class: one arrival per class is enough")
            e("s_mov_b32 s6, vcc_lo")
            for r in range(1, self.anyof):
                e(f"s_lshr_b32 s7, vcc_lo, {8*r}"); e("s_and_b32 s6, s6, s7")
            e("s_and_b32 s6, s6, 0x7f")
            e(f"s_mul_i32 exec_lo, s6, {sum(1 << (8 * r) for r in range(self.anyof)):#x}")
        else:
            e("s_and_b64 exec, exec, vcc")
        e("s_cbranch_execz L_f_ok")
        if self.rtsleep: e(f"s_sleep {self.rtsleep}")
        e("s_branch L_f_rt")
        L("L_f_ok")
        e("s_mov_b64 exec, -1")
        e("s_cmp_lg_u32 s60, 0"); e("s_cbranch_scc1 L_f_rd")
        L("L_f_rdd")
        e("s_mov_b64 exec, -1")
        e(f"ds_write_b32 v3, v2 offset:{S_HOLD}")
        e("s_endpgm")

    def aux(self):
        e, c, L = self.e, self.c, self.L
        c("================ aux waves (0..3) ================")
        e("s_setprio 3")
        if self.dbgstamp: e("s_memrealtime s[84:85]")
        c("wave 0 zero-inits sync words and fills the descriptor queue")
        e("s_cmp_lg_u32 s3, 0"); e("s_cbranch_scc1 L_a_noinit")
        e("v_lshlrev_b32 v5, 2, v0")
        e(f"v_add_u32 v5, {L_SYNC}, v5")
        e("v_cmp_gt_u32 vcc, 16, v0")
        e("s_and_saveexec_b64 s[6:7], vcc")
        e("ds_write_b32 v5, v2")
        e("s_mov_b64 exec, s[6:7]")
        L("L_a_noinit")
        c("lane-derived offsets")
        e("v_lshrrev_b32 v5, 5, v0")
        e("v_and_b32 v6, 31, v0")
        e("v_lshlrev_b32 v6, 4, v6")
        e("v_lshl_add_u32 v8, v5, 11, v6")
        self.ndma_voff("v16", 8192, "v11")
        e("v_lshlrev_b32 v25, 2, v0")
        e("v_mov_b32 v28, -1")
        c("exchange slot offsets: s46 QP, s47 ZG, s48 OP, s51 ZO, s58 ZO2, s56 slot this wave cleans")
        e("s_lshl_b32 s6, s5, 3"); e("s_add_u32 s6, s6, s4")
        e(f"s_xor_b32 s7, s6, {self.px << 3}")
        e(f"s_lshl_b32 s46, s7, {10 + self.qexact}")
        assert WS_QP == 0
        e("s_lshl_b32 s47, s7, 9"); e(f"s_add_u32 s47, s47, {WS_ZG:#x}")
        e("s_lshl_b32 s48, s2, 12"); e(f"s_add_u32 s48, s48, {WS_OP:#x}")
        e("s_lshl_b32 s49, s6, 8")
        e(f"s_add_u32 s51, s49, {WS_ZO:#x}")
        e(f"s_add_u32 s58, s49, {WS_ZO2:#x}")
        e("s_add_u32 s57, s47, 256")
        e("s_bitcmp1_b32 s3, 0")
        e("s_cselect_b32 s56, s58, s51"); e("s_cselect_b32 s57, s57, s47")
        e(f"s_xor_b32 s56, s56, {self.px << 11}")
        e("s_bitcmp1_b32 s3, 1")
        e("s_cselect_b32 s56, s57, s56")
        c("wq tile quarter: rows (c&1)*512 + w*128 .. , cols h*128 + (c>>1)*32")
        e("s_and_b32 s54, s4, 1"); e("s_lshl_b32 s54, s54, 2"); e("s_add_u32 s50, s54, s3")
        e("s_lshl_b32 s54, s50, 20"); e("s_lshl_b32 s7, s5, 8"); e(f"s_xor_b32 s7, s7, {self.px << 8}"); e("s_add_u32 s54, s54, s7")
        e("s_lshr_b32 s7, s4, 1"); e("s_lshl_b32 s7, s7, 6"); e("s_add_u32 s54, s54, s7")
        e("s_lshl_b32 s55, s3, 13")
        assert L_T0 == 0
        e("s_lshl_b32 s6, s3, 12")
        e(f"s_mov_b32 s53, {WS_EPOCH:#x}")
        e("s_waitcnt lgkmcnt(0)")
        e("s_load_dword s83, s[38:39], s53")
        self.srd(12, 16, 16384)
        self.srd(40, 22, 8 << 20)
        c("x loads")
        for k in range(4):
            e(f"buffer_load_dwordx4 v[{32+4*k}:{35+4*k}], v8, s[12:15], s6 offen offset:{k*512}")
        if self.diagc & 2:
            self.ndma_voff("v16", 64, "v11")
            e("s_lshl_b32 s54, s2, 2"); e("s_add_u32 s54, s54, s3"); e("s_lshl_b32 s54, s54, 13")
        self.ntile_dma(40, "v16", "s54", 64 if self.diagc & 2 else 8192, "s55", 8, mod=self.qmod)
        self.srd(8, 38, WS_SIZE)
        c("sentinel into the own ZO / ZO2 / ZG slots (complete before this workgroup publishes QP)")
        e("buffer_store_dword v28, v25, s[8:11], s56 offen " + self.clst)
        e("s_barrier")
        self.stamp_setup()
        e("v_and_b32 v9, 15, v0")
        e("v_lshrrev_b32 v11, 4, v0")
        e("v_and_b32 v12, 7, v0")
        c("publish offsets: v10 = b*128 + (lam>>3)*64 + G*16 ; v24 = b*512 + w*128 + (lam>>3)*64 + G*16")
        e("v_bfe_u32 v13, v0, 3, 1"); e("v_lshlrev_b32 v13, 6, v13"); e("v_lshl_add_u32 v13, v11, 4, v13")
        e("v_lshl_add_u32 v10, v12, 7, v13")
        e("v_lshl_add_u32 v24, v12, 9, v13"); e("s_lshl_b32 s6, s3, 7"); e("v_add_u32 v24, s6, v24")
        c("B-operand addresses: v58 xn, v26 hh (LDS), v27 o (global)")
        e(f"v_mul_u32_u24 v58, {XP}, v12"); e("v_lshl_add_u32 v58, v11, 4, v58"); e(f"v_add_u32 v58, {L_XN}, v58")
        e(f"v_mul_u32_u24 v26, 272, v12"); e("v_lshl_add_u32 v26, v11, 4, v26"); e(f"v_add_u32 v26, {L_HH}, v26")
        if self.z2: e("v_lshl_add_u32 v27, v12, 8, v13")
        else: e("v_lshlrev_b32 v27, 8, v12"); e("v_lshl_add_u32 v27, v11, 4, v27")
        c("QP gather offset v60 = (l>>3)*1024 + (l&7)*16 ; q LDS address v61 ; reduction scratch v59 ; v7 = lane*16")
        e("v_lshrrev_b32 v13, 3, v0"); e(f"v_lshlrev_b32 v60, {10 + self.qexact}, v13"); e("v_lshl_add_u32 v60, v12, 4, v60")
        e("v_lshlrev_b32 v61, 6, v11"); e("v_lshl_add_u32 v61, v12, 3, v61"); e(f"v_add_u32 v61, {L_Q}, v61")
        e("v_lshlrev_b32 v7, 4, v0")
        e("s_lshl_b32 s6, s3, 10"); e(f"s_add_u32 s6, s6, {L_RED}"); e("v_add_u32 v59, s6, v7")
        c("tr-read lane addresses: narrow v18 = (8G+r)*64 + cc*8 ; wide v20,v21 = (8G+r)*256 + ((nb^g)*32) + cc*8")
        e("v_bfe_u32 v12, v0, 2, 2")
        e("v_and_b32 v13, 3, v0")
        e("v_lshl_add_u32 v14, v11, 3, v12")
        e("v_lshlrev_b32 v18, 6, v14"); e("v_lshl_add_u32 v18, v13, 3, v18")
        e("v_lshlrev_b32 v14, 8, v14"); e("v_lshl_add_u32 v14, v13, 3, v14")
        e("v_and_b32 v15, 1, v11"); e("v_lshl_or_b32 v15, v15, 2, v12")
        e("s_lshl_b32 s6, s3, 1")
        e("v_xor_b32 v20, s6, v15"); e("v_xor_b32 v21, 1, v20")
        e("v_lshl_add_u32 v20, v20, 5, v14"); e("v_lshl_add_u32 v21, v21, 5, v14")
        e("v_cmp_lt_u32 s[44:45], 7, v9")
        c("s52 = FFN column group of this head group (>= 28: none)")
        e("s_mov_b32 s52, s5")
        if self.oddlight:
            e("s_lshr_b32 s6, s5, 1"); e("s_add_u32 s6, s6, 12")
            e("s_bitcmp1_b32 s5, 0"); e("s_cselect_b32 s6, 31, s6")
            e("s_cmp_ge_u32 s5, 24"); e("s_cselect_b32 s52, s6, s5")
        e("s_mov_b32 s80, 0xffffff00"); e("s_mov_b32 s81, 0x0c0c0400"); e("s_mov_b32 s82, 0x04000c0c")
        c("xn write address v57 = XN + (2w+half)*XP + (l&31)*16")
        e(f"s_mul_i32 s6, s3, {2*XP}"); e(f"s_add_u32 s6, s6, {L_XN}")
        e(f"v_mul_u32_u24 v57, {XP}, v5"); e("v_add3_u32 v57, v57, v6, s6")
        c("---- layernorm: lanes 0-31 row 2w, lanes 32-63 row 2w+1 ----")
        e("s_mov_b32 s6, 0x3f803f80")
        e("v_mov_b32 v52, 0"); e("v_mov_b32 v53, 0")
        e("s_waitcnt vmcnt(9)")
        for k in range(16):
            e(f"v_dot2c_f32_bf16 v{52+(k&1)}, s6, v{32+k}")
        for k in range(16):
            e(f"v_lshlrev_b32 v{96+2*k}, 16, v{32+k}")
            e(f"v_and_b32 v{97+2*k}, 0xffff0000, v{32+k}")
        e("v_add_f32 v52, v52, v53")
        self.red_row("v52"); self.red_swap("v52", "v53", 16)
        e(f"v_mul_f32 v52, {f2u(1.0/1024):#x}, v52")
        e("v_mov_b32 v54, 0"); e("v_mov_b32 v55, 0")
        for k in range(16):
            t = 48 + 2 * (k & 1)
            e(f"v_pk_add_f32 v[{t}:{t+1}], v[{96+2*k}:{97+2*k}], v[52:53] op_sel_hi:[1,0] neg_lo:[0,1] neg_hi:[0,1]")
            e(f"v_pk_fma_f32 v[54:55], v[{t}:{t+1}], v[{t}:{t+1}], v[54:55]")
        e("v_add_f32 v54, v54, v55")
        self.red_row("v54"); self.red_swap("v54", "v55", 16)
        e(f"v_mul_f32 v54, {f2u(1.0/1024):#x}, v54")
        self.ln_chain("v52", "v54")
        for k in range(16):
            e(f"v_pk_add_f32 v[{96+2*k}:{97+2*k}], v[{96+2*k}:{97+2*k}], v[52:53] op_sel_hi:[1,0] neg_lo:[0,1] neg_hi:[0,1]")
        for k in range(32):
            self.bf16r(f"v{96+k}", f"v{96+k}")
        for k in range(16):
            e(f"v_pk_mul_f32 v[{96+2*k}:{97+2*k}], v[{96+2*k}:{97+2*k}], v[54:55] op_sel_hi:[1,0]")
        for k in range(16):
            e(f"v_cvt_pk_bf16_f32 v{32+k}, v{96+2*k}, v{97+2*k}")
            if k & 3 == 3: e(f"ds_write_b128 v57, v[{29+k}:{32+k}] offset:{(k>>2)*512}")
        e("s_waitcnt lgkmcnt(0)")
        self.lds_add1("v3", S_AUXBAR, "v4", "s[6:7]")
        c("launch tag word v19 = epoch + step; v12..v15 = its bytes")
        e(f"s_add_u32 s83, s83, {EPOCH_STEP:#x}"); e("s_bitset0_b32 s83, 0")
        e("v_mov_b32 v19, s83")
        for r in range(4): e(f"v_bfe_u32 v{12+r}, v19, {8*r}, 8")
        if self.qexact:
            for r in range(4): e(f"v_mov_b32 v{33+2*r}, s83")
        e("s_lshl_b32 s6, s50, 8"); e("v_add_u32 v22, s6, v58")
        e("s_lshl_b32 s6, s3, 13"); e("v_add_u32 v23, s6, v18")
        self.lds_wait_ge("v3", S_AUXBAR, 4, "v56", "s6", sleep=0)
        c("---- q partial GEMM ----")
        for ks in range(4):
            e(f"ds_read_b128 v[{64+4*ks}:{67+4*ks}], v22 offset:{ks*64}")
        e("s_waitcnt vmcnt(1)")
        if self.stamps:
            e("s_cmp_lg_u32 s3, 0"); e("s_cbranch_scc1 L_st1"); self.stamp(1); L("L_st1")
        self.nfrag_reads("v23", 0, 96)
        e("s_waitcnt lgkmcnt(0)")
        self.mfmas(96, 64, 80, True)
        if self.qexact:
            self.wave_reduce(80, 3, "L_a123", dst=(32, 34, 36, 38))
            self.stamp(8)
            c("granules {value, tag}")
            e("s_waitcnt vmcnt(0)")
            e("buffer_store_dwordx4 v[32:35], v10, s[8:11], s46 offen sc1")
            e("buffer_store_dwordx4 v[36:39], v10, s[8:11], s46 offen offset:1024 sc1")
            self.stamp(9)
            c("---- wave 0: gather q ----")
            e("s_lshl_b32 s60, s5, 14"); e("s_lshl_b32 s6, s4, 7"); e("s_add_u32 s60, s60, s6")
            e("s_waitcnt vmcnt(0)")
            self.poll_masked([f"buffer_load_dwordx4 v[{128+4*k}:{131+4*k}], v60, s[8:11], s60 offen offset:{k*1024} sc1" for k in range(2)],
                             [128, 132], "v57", "s53", 72, tagged="pair", st1=10, sleep=self.qsleep)
            for r in range(4): e(f"v_add_f32_dpp v{128+2*r}, v{128+2*r}, v{128+2*r} row_ror:8 row_mask:0xf bank_mask:0xf")
            e("v_cvt_pk_bf16_f32 v128, v128, v130"); e("v_cvt_pk_bf16_f32 v129, v132, v134")
        else:
            self.wave_reduce(80, 3, "L_a123")
            self.stamp(8)
            for r in range(4):
                e(f"v_add_u32 v{28+r}, 0x80, v{28+r}")
            for r in range(4):
                e(f"v_and_or_b32 v{28+r}, v{28+r}, s80, v{12+r}")
            e("s_waitcnt vmcnt(0)")
            e("buffer_store_dwordx4 v[28:31], v10, s[8:11], s46 offen sc1")
            self.stamp(9)
            c("---- wave 0: gather q ----")
            e("s_lshl_b32 s60, s5, 13"); e("s_lshl_b32 s6, s4, 7"); e("s_add_u32 s60, s60, s6")
            if self.qdelay: e(f"s_sleep {self.qdelay}")
            else: e("s_waitcnt vmcnt(0)")
            self.poll_masked(["buffer_load_dwordx4 v[128:131], v60, s[8:11], s60 offen sc1"],
                             [128], "v57", "s53", 72, tagged=True, st1=10, sleep=self.qsleep)
            for r in range(4): e(f"v_and_b32 v{128+r}, s80, v{128+r}")
            e("s_nop 0")
            for r in range(4): e(f"v_add_f32_dpp v{128+r}, v{128+r}, v{128+r} row_ror:8 row_mask:0xf bank_mask:0xf")
            e("v_cvt_pk_bf16_f32 v128, v128, v129"); e("v_cvt_pk_bf16_f32 v129, v130, v131")
        e("ds_write_b64 v61, v[128:129]")
        e("s_mov_b64 exec, 1")
        e(f"ds_add_u32 v3, v4 offset:{S_QRDY}")
        e("s_mov_b64 exec, -1")
        self.stamp(2)
        if self.wodef: e("s_branch L_a_bar2")
        c("wo tile into T0 (all four waves have consumed the wq tile)")
        self.srd(40, 24, 8 << 20)
        e(f"s_mov_b32 s7, {L_T0}"); e("s_mov_b32 s59, s5")
        e("s_branch L_a03_dma")
        L("L_a123")
        c("---- waves 1..3: FFN tile DMA (gate-or-up columns, down) ----")
        e("s_cmp_ge_u32 s52, 28"); e("s_cbranch_scc1 L_a_bar2")
        if self.pfw: self.lds_wait_ge("v3", S_PFD, 4, "v56", "s6", sleep=2)
        e("s_cmp_eq_u32 s3, 3"); e("s_cbranch_scc1 " + ("L_a_bar2" if self.dndef else "L_a3_dma"))
        self.ndma_voff("v16", 7168, "v56")
        e("s_cmp_lt_u32 s4, 4")
        e("s_cselect_b32 s40, s28, s30"); e("s_cselect_b32 s41, s29, s31")
        assert L_T1 == 1 << 15 and L_T2 == 2 << 15
        e("s_lshl_b32 s7, s3, 15")
        e(f"s_mov_b32 s42, {7 << 20:#x}"); e("s_mov_b32 s43, 0x20000")
        e("s_sub_u32 s6, s3, 1"); e(f"s_mul_i32 s6, s6, {512*7168}"); e("s_lshl_b32 s53, s52, 8"); e(f"s_xor_b32 s53, s53, {self.px << 8}"); e("s_add_u32 s6, s6, s53")
        e("s_and_b32 s53, s4, 3"); e("s_lshl_b32 s53, s53, 6"); e("s_add_u32 s6, s6, s53")
        if self.diagc & 1:
            self.ndma_voff("v16", 64, "v56")
            e("s_lshl_b32 s6, s52, 2"); e("s_and_b32 s53, s4, 3"); e("s_add_u32 s6, s6, s53"); e("s_lshl_b32 s6, s6, 1")
            e("s_add_u32 s6, s6, s3"); e("s_sub_u32 s6, s6, 1"); e("s_lshl_b32 s6, s6, 15")
        self.ntile_dma(40, "v16", "s6", 64 if self.diagc & 1 else 7168, "s7", 32, win=self.dmaw, mod=self.fmod)
        e("s_branch L_a_bar2")
        L("L_a3_dma")
        self.srd(40, 32, 7 << 20)
        e(f"s_mov_b32 s7, {L_T3}"); e("s_mov_b32 s59, s52")
        L("L_a03_dma")
        self.dma_voffs("v16", "v17", 2048, "v56", "v57", "s6")
        e("s_lshl_b32 s6, s59, 18"); e("s_lshl_b32 s53, s4, 8"); e("s_add_u32 s6, s6, s53")
        self.tile_dma(40, "v16", "v17", "s6", 2048, "s7", 0, 32, win=self.dmaw)
        L("L_a_bar2")
        if self.wodef:
            c("wo: each wave fetches its own 32 columns into its quarter of T0; the first rows now, the rest behind the V stream")
            self.ndma_voff("v17", 2048, "v56")
            self.srd(68, 24, 8 << 20)
            e("s_lshl_b32 s65, s3, 13")
            e("s_lshl_b32 s64, s4, 8"); e("s_lshl_b32 s6, s3, 6"); e("s_add_u32 s64, s64, s6")
            e("s_lshl_b32 s6, s5, 18"); e("s_add_u32 s64, s64, s6")
            if self.woearly:
                e(f"s_waitcnt vmcnt({max(self.dmaw - self.woearly, 0)})")
                self.ntile_dma(68, "v17", "s64", 2048, "s65", self.woearly)
        c("output element of this lane: n = 4j + 2*bit5 + bit4 within 32-col group; b'=h>>2, col = c*128+(h&3)*32+n")
        e("v_and_b32 v56, 7, v0"); e("v_lshlrev_b32 v56, 2, v56")
        e("v_lshl_add_u32 v56, v5, 1, v56")
        e("v_bfe_u32 v57, v0, 4, 1"); e("v_add_u32 v56, v56, v57")
        e("v_lshlrev_b32 v62, 1, v56")
        e("s_lshr_b32 s6, s5, 2"); e("s_lshl_b32 s6, s6, 11")
        e("s_lshl_b32 s7, s4, 8"); e("s_add_u32 s6, s6, s7")
        e("s_and_b32 s7, s5, 3"); e("s_lshl_b32 s7, s7, 6"); e("s_add_u32 s6, s6, s7")
        e("v_add_u32 v62, s6, v62")
        e("buffer_load_ushort v63, v62, s[12:15], 0 offen")
        c("accumulators for the output partial: v[88:95]")
        for r in range(8): e(f"v_mov_b32 v{88+r}, 0")
        e("s_waitcnt vmcnt(0)")
        self.lds_add1("v3", S_AUXBAR, "v4", "s[6:7]")
        self.lds_wait_ge("v3", S_AUXBAR, 8, "v56", "s6", sleep=4)
        if self.stamps:
            e("s_cmp_lg_u32 s3, 0"); e("s_cbranch_scc1 L_st3"); self.stamp(3); L("L_st3")
        e("s_cmp_ge_u32 s52, 28"); e("s_cbranch_scc1 L_a_ffn_done")
        if self.skip == "all": e("s_branch L_a_ffn_done")
        c("---- gate-or-up columns: this wave covers k = 256w .. 256w+255 ----")
        e("s_lshl_b32 s6, s3, 9"); e("v_add_u32 v22, s6, v58")
        e("s_lshl_b32 s6, s3, 14"); e(f"s_add_u32 s6, s6, {L_T1}"); e("v_add_u32 v23, s6, v18")
        for ch in range(2):
            for ks in range(4):
                e(f"ds_read_b128 v[{64+4*ks}:{67+4*ks}], v22 offset:{ch*256 + ks*64}")
            self.nfrag_reads("v23", ch * 8192, 96)
            e("s_waitcnt lgkmcnt(0)")
            self.mfmas(96, 64, 80, ch == 0)
            e("s_nop 7")
        if not self.dndef: self.frag_reads(L_T3, 96)
        self.wave_reduce(80, 6, "L_a_hh")
        e("v_cvt_pk_bf16_f32 v28, v28, v29"); e("v_cvt_pk_bf16_f32 v29, v30, v31")
        self.canon("v28", "v30"); self.canon("v29", "v30")
        e("v_lshrrev_b32 v56, 1, v10")
        e("buffer_store_dwordx2 v[28:29], v56, s[8:11], s47 offen sc1")
        c("wave 0: gather g,u of the group -> hh -> LDS")
        self.lds_wait_ge("v3", S_PROG, self.zh_trig, "v56", "s6", sleep=16)
        e("s_lshl_b32 s60, s5, 12"); e(f"s_add_u32 s60, s60, {WS_ZG:#x}")
        self.stamp(12)
        self.poll_masked([f"buffer_load_dwordx4 v[{128+4*k}:{131+4*k}], v7, s[8:11], s60 offen offset:{k*1024} sc1" for k in range(4)],
                         [128 + 4 * k for k in range(4)], "v57", "s53", 72, sleep=32)
        self.stamp(13)
        for d in range(8):
            e(f"v_lshlrev_b32 v144, 16, v{128+d}"); e(f"v_and_b32 v145, 0xffff0000, v{128+d}")
            e(f"v_lshlrev_b32 v146, 16, v{136+d}"); e(f"v_and_b32 v147, 0xffff0000, v{136+d}")
            e("v_mul_f32 v144, v144, v146"); e("v_mul_f32 v145, v145, v147")
            e(f"v_cvt_pk_bf16_f32 v{128+d}, v144, v145")
        c("HH + b*272 + (2k + half)*64 + (l&3)*16, b = (l>>2)&7")
        e("v_bfe_u32 v56, v0, 2, 3"); e("v_mul_u32_u24 v56, 272, v56"); e("v_lshl_add_u32 v56, v5, 6, v56")
        e("v_and_b32 v57, 3, v0"); e("v_lshl_add_u32 v56, v57, 4, v56"); e(f"v_add_u32 v56, {L_HH}, v56")
        e("ds_write_b128 v56, v[128:131]"); e("ds_write_b128 v56, v[132:135] offset:128")
        e("s_waitcnt lgkmcnt(0)")
        self.lds_add1("v3", S_HH, "v4", "s[6:7]")
        L("L_a_hh")
        self.lds_wait_ge("v3", S_HH, 1, "v56", "s6", sleep=16)
        for ks in range(4):
            e(f"ds_read_b128 v[{32+4*ks}:{35+4*ks}], v26 offset:{ks*64}")
        e("s_waitcnt lgkmcnt(0)")
        if not self.dndef:
            self.mfmas(96, 32, 88, False)
            e("s_nop 7")
        L("L_a_ffn_done")
        if self.stamps:
            e("s_cmp_lg_u32 s3, 0"); e("s_cbranch_scc1 L_st4"); self.stamp(4); L("L_st4")
        c("OP gather: load k, lane group p reads the line of head h ^ (8k+p); offsets v58 + s[16+k]")
        e("v_lshrrev_b32 v56, 3, v0"); e("s_and_b32 s6, s5, 7"); e("v_xor_b32 v56, s6, v56"); e("v_lshlrev_b32 v56, 12, v56")
        e("v_and_b32 v57, 7, v0"); e("v_lshl_add_u32 v58, v57, 4, v56")
        e("s_lshl_b32 s7, s4, 17"); e("s_lshl_b32 s6, s5, 7"); e("s_add_u32 s7, s7, s6")
        e(f"s_add_u32 s7, s7, {WS_OP:#x}")
        e("s_lshr_b32 s6, s5, 3")
        for k in range(4):
            e(f"s_xor_b32 s{16+k}, s6, {k}"); e(f"s_lshl_b32 s{16+k}, s{16+k}, 15"); e(f"s_add_u32 s{16+k}, s{16+k}, s7")
        if self.o2k:
            assert not self.wodef
            e(f"v_mov_b32 v55, {WS_OP2 - WS_OP:#x}"); e("v_cmp_gt_u32 vcc, 8, v0"); e("v_cndmask_b32 v55, 0, v55, vcc")
            e("v_xor_b32 v58, v58, v55")
            e(f"s_add_u32 s65, s48, {WS_OP2 - WS_OP:#x}")
            e("s_and_b32 s66, s5, 3")
            e("s_bitcmp1_b32 s5, 2"); e("s_mov_b32 s67, 0x55555555"); e("s_cselect_b32 s67, 0xaaaaaaaa, s67")
        if self.iw:
            c("first pass over the final-reduction arithmetic (brings its code into the instruction cache; no stores)")
            e("s_mov_b32 s95, 1"); e("s_branch L_a_fin"); L("L_a_finret"); e("s_mov_b32 s95, 0")
        c("wo fragments")
        if not self.wodef: self.frag_reads(L_T0, 96)
        e(f"s_lshl_b32 s60, s5, 11"); e(f"s_add_u32 s60, s60, {WS_ZO2 if self.ok else WS_ZO:#x}")
        if self.wodef:
            c("late tiles: each wave fetches its own 32 columns of wo (and w_down) behind the last V loads")
            self.ndma_voff("v16", 2048, "v56")
            e("s_lshl_b32 s7, s3, 13"); e("v_add_u32 v23, s7, v18")
            e("s_lshl_b32 s54, s4, 8"); e("s_lshl_b32 s6, s3, 6"); e("s_add_u32 s54, s54, s6")
            e("s_lshl_b32 s55, s52, 18"); e("s_add_u32 s55, s55, s54")
            e("s_lshl_b32 s6, s5, 18"); e("s_add_u32 s54, s54, s6")
            e(f"s_add_u32 s59, s7, {L_T1}")
            if self.wowarm:
                c("touch the tile's page ahead of time (address translation; the value is unused)")
                self.lds_wait_ge("v3", S_PROG, self.wowarm, "v56", "s6", sleep=16)
                self.srd(40, 24, 8 << 20)
                e("s_mov_b64 exec, 1")
                e("buffer_load_dword v49, v16, s[40:43], s54 offen nt")
                if self.dndef:
                    self.srd(40, 32, 7 << 20)
                    e("buffer_load_dword v49, v16, s[40:43], s55 offen nt")
                e("s_mov_b64 exec, -1")
            self.lds_wait_ge("v3", S_PROG, min(self.wo_trig, self.dn_trig, 31) - 1, "v56", "s6", sleep=16)
            if self.dndef:
                e("s_cmp_ge_u32 s52, 28"); e("s_cbranch_scc1 L_a_nodn")
                self.srd(40, 32, 7 << 20)
                self.lds_wait_ge("v3", S_PROG, self.dn_trig, "v56", "s6", sleep=2)
                self.ntile_dma(40, "v16", "s55", 2048, "s59", 8)
                L("L_a_nodn")
            self.srd(40, 24, 8 << 20)
            if self.wo_trig <= 32:
                self.lds_wait_ge("v3", S_PROG, self.wo_trig, "v56", "s6", sleep=2)
                if self.wosleep: e(f"s_sleep {self.wosleep}")
                self.ntile_dma(68, "v17", "s64", 2048, "s65", 8 - self.woearly)
        else:
            self.lds_wait_ge("v3", S_PROG, NITEMS - 2, "v56", "s6", sleep=16)
        def late_frags():
            if self.wodef:
                self.nfrag_reads("v23", 0, 96)
                if self.dndef: self.nfrag_reads("v23", L_T1, 128)
        e("s_cmp_lg_u32 s3, 0"); e("s_cbranch_scc1 L_a_late123")
        c("---- wave 0: merge the stream waves' partials ----")
        e("v_lshlrev_b32 v56, 3, v0"); e(f"v_add_u32 v56, {L_PO}, v56")
        e(f"v_mov_b32 v57, {L_PML}")
        self.lds_wait_ge("v3", S_PCNT, 4, "v61", "s6", sleep=0)
        self.stamp(5)
        e("ds_read_b128 v[128:131], v57"); e("ds_read_b128 v[132:135], v57 offset:16")
        for w in range(4): e(f"ds_read_b64 v[{136+2*w}:{137+2*w}], v56 offset:{w*512}")
        e("s_waitcnt lgkmcnt(4)")
        e("v_max3_f32 v144, v128, v130, v132"); e("v_max_f32 v144, v144, v134")
        for w in range(4): e(f"v_sub_f32 v{128+2*w}, v{128+2*w}, v144")
        for w in range(4): e(f"v_exp_f32 v{128+2*w}, v{128+2*w}")
        e("s_nop 0")
        e("v_mul_f32 v145, v128, v129")
        for w in range(1, 4): e(f"v_fmac_f32 v145, v{128+2*w}, v{129+2*w}")
        e("v_rcp_f32 v145, v145")
        e("s_waitcnt lgkmcnt(0)")
        e("v_mul_f32 v146, v128, v136"); e("v_mul_f32 v147, v128, v137")
        for w in range(1, 4):
            e(f"v_fmac_f32 v146, v{128+2*w}, v{136+2*w}"); e(f"v_fmac_f32 v147, v{128+2*w}, v{137+2*w}")
        e("v_mul_f32 v146, v146, v145"); e("v_mul_f32 v147, v147, v145")
        e("v_cvt_pk_bf16_f32 v48, v146, v147")
        self.canon("v48", "v147")
        if self.ok: e("buffer_store_dword v48, v25, s[8:11], s58 offen")
        else: e("buffer_store_dword v48, v25, s[8:11], s51 offen sc1")
        if self.wodef and self.wo_trig > 32:
            e("s_branch L_a_w33")
            L("L_a_late123")
            self.lds_wait_ge("v3", S_PCNT, self.wo_trig - 32, "v56", "s6", sleep=1)
            if self.wosleep: e(f"s_sleep {self.wosleep}")
            L("L_a_w33")
            self.ntile_dma(68, "v17", "s64", 2048, "s65", 8 - self.woearly)
            e("s_branch L_a_zo")
        else:
            if self.wodef: e("s_waitcnt vmcnt(1)")
            late_frags()
            e("s_branch L_a_zo")
            L("L_a_late123")
            if self.wodef: e("s_waitcnt vmcnt(0)")
            late_frags()
        c("waves 1..3 start polling when the local stream is finished")
        self.lds_wait_ge("v3", S_PCNT, 4, "v56", "s6", sleep=1)
        if self.osleep: e(f"s_sleep {self.osleep}")
        L("L_a_zo")
        def zo_late():
            lz = self.newlab("Lz")
            e(f"s_cmp_lg_u32 s3, 0"); e(f"s_cbranch_scc1 {lz}")
            e("buffer_store_dword v48, v25, s[8:11], s51 offen sc1")
            L(lz)
        def dn_mid():
            if self.wodef and self.wo_trig > 32:
                e("s_waitcnt vmcnt(4)")
                late_frags()
            if not self.dndef: return
            e("s_cmp_ge_u32 s52, 28"); e("s_cbranch_scc1 L_a_nodn2")
            e("s_waitcnt lgkmcnt(0)")
            self.mfmas(128, 32, 88, False)
            L("L_a_nodn2")
        nz = 2 if self.z2 else 4
        self.poll_masked([f"buffer_load_dwordx4 v[{64+4*k}:{67+4*k}], v27, s[8:11], s60 offen offset:{k*256//nz} sc1" for k in range(nz)],
                         [64 + 4 * k for k in range(nz)], "v57", "s53", 72, sleep=self.opsleep, pipe=self.zpipe, pdelay=self.zpd,
                         mid=dn_mid,
                         alt=(["s60"], WS_ZO ^ WS_ZO2, self.ok, zo_late) if self.ok else None)
        if self.ok: zo_late()
        e("s_waitcnt lgkmcnt(0)")
        if self.z2:
            c("columns 0-7 carry the even k-steps, columns 8-15 the odd ones")
            for Lk in range(2):
                for (dd, nbi, ks) in ((80, 1, 2*Lk), (84, 0, 2*Lk+1), (88, 0, 2*Lk), (92, 1, 2*Lk+1)):
                    r = 96 + (nbi * 4 + ks) * 4
                    cc = "0" if (dd < 88 and Lk == 0) else f"v[{dd}:{dd+3}]"
                    e(f"v_mfma_f32_16x16x32_bf16 v[{dd}:{dd+3}], v[{r}:{r+3}], v[{64+4*Lk}:{67+4*Lk}], {cc}")
        else:
            self.mfmas(96, 64, 88, False)
        if self.o2k:
            self.publish(88, "s48", store=False, d2=80 if self.z2 else None)
            c("lines whose reader has the same id class also get a plain-store copy")
            e("s_cmp_lg_u32 s3, s66"); e("s_cbranch_scc1 L_a_noo2")
            e("s_mov_b32 exec_lo, s67"); e("s_mov_b32 exec_hi, s67")
            e("buffer_store_dwordx4 v[28:31], v24, s[8:11], s65 offen")
            e("s_mov_b64 exec, -1")
            L("L_a_noo2")
            e("buffer_store_dwordx4 v[28:31], v24, s[8:11], s48 offen sc1")
        else:
            self.publish(88, "s48", mod=self.opst)
        e(f"s_cmp_lg_u32 s3, {self.fw}"); e("s_cbranch_scc1 L_done")
        self.stamp(6)
        c("---- wave 0: final reduction over the 32 heads' partials ----")
        if self.fsleep > 0: e(f"s_sleep {self.fsleep}")
        if self.fsleep < 0: e("s_waitcnt vmcnt(0)")
        self.poll_masked([f"buffer_load_dwordx4 v[{128+4*k}:{131+4*k}], v58, s[8:11], s{16+k} offen {self.opld}" for k in range(4)],
                         [128 + 4 * k for k in range(4)], "v57", "s53", 72, tagged=True, pipe=self.opipe, pdelay=self.opd, sleep=self.fpsleep,
                         alt=(["v58"], "v55", self.o2k, None) if self.o2k else None)
        if self.iw: L("L_a_fin")
        self.sum4_halves(96, "v144", "v145", src=128)
        e("s_nop 1")
        e("v_permlane16_swap_b32 v144, v145")
        e("s_nop 1")
        e("v_add_f32 v144, v144, v145")
        xr = "v61" if self.iw else "v63"
        e(f"v_lshlrev_b32 {xr}, 16, v63")
        e("s_cmp_lg_u32 s95, 0" if self.iw else "s_nop 0")
        e("v_add_f32_dpp v144, v144, v144 row_ror:8 row_mask:0xf bank_mask:0xf")
        e(f"v_add_f32 v144, v144, {xr}")
        e("v_cvt_pk_bf16_f32 v144, v144, v144")
        self.srd(40, 34, 16384)
        if self.iw: e("s_cbranch_scc1 L_a_finret")
        e("s_mov_b32 exec_lo, 0x00ff00ff"); e("s_mov_b32 exec_hi, 0x00ff00ff")
        e("buffer_store_short v144, v62, s[40:43], 0 offen " + self.outst)
        c("workgroup 0 advances the epoch (every workgroup has read it and used it by now)")
        e("s_cmp_lg_u32 s2, 0"); e("s_cbranch_scc1 L_a_noep")
        e("s_mov_b64 exec, 1")
        e("v_mov_b32 v56, s83"); e(f"v_mov_b32 v57, {WS_EPOCH:#x}")
        e("buffer_store_dword v56, v57, s[8:11], 0 offen " + self.outst)
        L("L_a_noep")
        e("s_mov_b64 exec, -1")
        self.stamp(7)
        e("s_branch L_done")

    def stream(self):
        e, c, L = self.e, self.c, self.L
        NL = 16
        IB = NL * 4096
        NI = (1 << 20) // IB
        assert 2 * NI == NITEMS
        RING = 64
        SP = 24
        S = 40
        ACC = 16
        Q = 12
        vM, vL, vS, vT, vPl, vA = "v56", "v57", "v58", "v59", "v60", "v61"
        vLane, vOff, vH = "v5", "v6", "v7"
        vQa, vPo = "v8", "v9"
        fc = self.lead > 0
        MASK = (1 << 20) - IB
        c("================ stream waves (4..7): pass 1 over K, pass 2 over V ================")
        e("s_sub_u32 s3, s3, 4")
        e(f"v_lshlrev_b32 {vLane}, 4, v0")
        e("s_lshl_b32 s6, s3, 10"); e("s_lshl_b32 s7, s2, 20"); e("s_add_u32 s6, s6, s7")
        e(f"v_add_u32 {vLane}, s6, {vLane}")
        e("s_mov_b32 s6, 0")
        if self.rot & 1: e("s_lshl_b32 s6, s3, 1")
        if self.rot & 2: e("s_lshr_b32 s7, s2, 3"); e("s_add_u32 s6, s6, s7")
        e("s_lshl_b32 s6, s6, 12")
        for i in range(NL):
            e(f"s_and_b32 s{64+i}, s6, {IB-4096:#x}"); e("s_add_u32 s6, s6, 0x1000")
            if self.numa:
                e(f"s_and_b32 s7, s{64+i}, 0xe000"); e(f"s_add_u32 s{64+i}, s{64+i}, s7")
        if self.numa:
            gK, gV = [int(x) for x in self.numa.split(",")]
            e("s_getreg_b32 s7, hwreg(HW_REG_XCC_ID)"); e("s_lshr_b32 s7, s7, 2"); e("s_lshr_b32 s6, s2, 1"); e("s_xor_b32 s7, s7, s6")
            e(f"s_xor_b32 s7, s7, {gK}"); e("s_and_b32 s7, s7, 1"); e("s_lshl_b32 s7, s7, 13")
            e(f"v_add_u32 {vLane}, s7, {vLane}"); e(f"v_xor_b32 {vLane}, 0x400000, {vLane}")
        c("s52 = offset (within the head) of the item being issued; the order is rotated per workgroup")
        if self.irot == 0: e("s_mov_b32 s52, 0")
        else:
            e("s_lshr_b32 s52, s2, 3")
            e(f"s_mul_i32 s52, s52, {IB}"); e(f"s_and_b32 s52, s52, {MASK:#x}")
        e(f"v_add_u32 {vOff}, s52, {vLane}")
        e("s_waitcnt lgkmcnt(0)")
        self.stamp_setup()
        if self.stamps:
            e("s_cmp_lg_u32 s3, 0"); e("s_cbranch_scc1 L_st0"); self.stamp(0); L("L_st0")
        self.srd(8, 18, 1 << 28)
        def issue(i):
            r = RING + i * 4
            e(f"buffer_load_dwordx4 v[{r}:{r+3}], {vOff}, s[8:11], s{64+i} offen nt")
        def issue_seq(n):
            if self.pfw and n >= self.pfw: e(f"s_waitcnt vmcnt({self.pfw-1})")
            issue(n)
        for n in range(self.pre): issue_seq(n)
        e("s_barrier")
        c("constants")
        e("v_and_b32 v10, 15, v0")
        e(f"v_lshlrev_b32 {vQa}, 4, v10"); e(f"v_add_u32 {vQa}, {L_Q}, {vQa}")
        e(f"v_lshlrev_b32 {vPo}, 5, v10"); e("v_lshrrev_b32 v11, 4, v0"); e(f"v_lshl_add_u32 {vPo}, v11, 3, {vPo}")
        e("s_lshl_b32 s6, s3, 9"); e(f"s_add_u32 s6, s6, {L_PO}"); e(f"v_add_u32 {vPo}, s6, {vPo}")
        e("v_and_b32 v10, 2, v0"); e("v_cmp_ne_u32 s[46:47], 0, v10")
        e("v_and_b32 v10, 1, v0"); e("v_cmp_ne_u32 s[44:45], 0, v10")
        e(f"s_mov_b32 s48, {f2u(128 ** -0.5):#x}")
        e(f"s_mov_b32 s49, {f2u(1.4426950408889634):#x}")
        e("s_mov_b32 s53, 0")
        for r in range(8): e(f"v_mov_b32 v{ACC+r}, 0")
        for n in range(self.pre, NL): issue_seq(n)
        if self.pfw:
            e("s_mov_b64 exec, 1"); e(f"ds_add_u32 v3, v4 offset:{S_PFD}"); e("s_mov_b64 exec, -1")
        c("wait for q")
        self.lds_wait_ge("v3", S_QRDY, 1, "v10", "s6", sleep=2)
        e(f"ds_read_b128 v[{Q}:{Q+3}], {vQa}")
        e("s_waitcnt lgkmcnt(0)")
        def top(kpass):
            c("offset of item t+1")
            e(f"s_add_u32 s52, s52, {IB * (2 if self.numa else 1)}"); e(f"s_and_b32 s52, s52, {MASK:#x}")
            if self.numa:
                e("s_cselect_b32 s6, 0, 0x400000"); e(f"v_xor_b32 {vLane}, s6, {vLane}")
                if kpass and gK != gV:
                    e(f"s_cmp_eq_u32 s53, {NI-1}"); e("s_cselect_b32 s6, 0x2000, 0"); e(f"v_xor_b32 {vLane}, s6, {vLane}")
            if kpass:
                e(f"s_cmp_ge_u32 s53, {NI-1}")
                e("s_cselect_b32 s8, s20, s18"); e("s_cselect_b32 s9, s21, s19")
                if self.vrot: e(f"s_cselect_b32 s52, {self.vrot * IB:#x}, s52")
                e(f"v_add_u32 {vOff}, s52, {vLane}")
            else:
                e(f"s_cmp_ge_u32 s53, {NITEMS-1}")
                e(f"s_cselect_b32 s6, {OOB:#x}, s52")
                e(f"v_add_u32 {vOff}, s6, {vLane}")
            if self.stamps:
                e("s_memrealtime s[90:91]"); e("s_waitcnt lgkmcnt(0)")
                e("v_mov_b32 v164, s90"); e("v_mov_b32 v165, s91")
                e("s_lshl_b32 s6, s53, 3"); e(f"s_add_u32 s6, s6, {L_TS}"); e("v_mov_b32 v166, s6")
                e("s_cmp_lg_u32 s3, 0"); lx = self.newlab("Lts"); e(f"s_cbranch_scc1 {lx}")
                e("ds_write_b64 v166, v[164:165]"); L(lx)
            if not self.adv:
                e("v_mov_b32 v10, s53")
                e(f"ds_max_u32 v3, v10 offset:{S_PROG}")
            if fc:
                lchk, lgo = self.newlab("Lfc"), self.newlab("Lfg")
                c("flow control: S_HOLD = 255 - (last item whose successor may be issued); 0 = no limit")
                L(lchk)
                e(f"ds_read_b32 {vH}, v3 offset:{S_HOLD}")
                e("s_waitcnt lgkmcnt(0)")
                e(f"v_readfirstlane_b32 s7, {vH}")
                e("s_nop 0")
                e("s_add_u32 s7, s7, s53")
                e("s_cmp_le_u32 s7, 255"); e(f"s_cbranch_scc1 {lgo}")
                e(f"s_sleep {self.slowsleep}")
                e(f"s_branch {lchk}")
                L(lgo)
            e("s_add_u32 s53, s53, 1")
        def announce(i):
            if self.adv and i == NL - self.adv:
                e("v_mov_b32 v10, s53")
                e(f"ds_max_u32 v3, v10 offset:{S_PROG}")
        def shift():
            for i in range(NI - 1): e(f"v_mov_b32 v{S+i}, v{S+i+1}")
        L("L_s_k")
        top(True)
        shift()
        for i in range(NL):
            r = RING + i * 4
            e(f"s_waitcnt vmcnt({NL-1})")
            e(f"v_dot2_f32_bf16 v{SP+i}, v{r}, v{Q}, 0")
            for j in range(1, 4):
                e(f"v_dot2_f32_bf16 v{SP+i}, v{r+j}, v{Q+j}, v{SP+i}")
            issue(i)
            announce(i)
        c("reduce-scatter over the 16 lanes of a row")
        for i in range(8):
            e(f"v_add_f32_dpp v{SP+i}, v{SP+i}, v{SP+i} row_ror:8 row_mask:0xf bank_mask:0x3")
        for i in range(8):
            e(f"v_add_f32_dpp v{SP+i}, v{SP+8+i}, v{SP+8+i} row_ror:8 row_mask:0xf bank_mask:0xc")
        for i in range(4):
            e(f"v_add_f32_dpp v{SP+i}, v{SP+i}, v{SP+i} row_shl:4 row_mask:0xf bank_mask:0x5")
        for i in range(4):
            e(f"v_add_f32_dpp v{SP+i}, v{SP+4+i}, v{SP+4+i} row_shr:4 row_mask:0xf bank_mask:0xa")
        for i in range(4):
            e(f"v_add_f32_dpp v{SP+i}, v{SP+i}, v{SP+i} quad_perm:[2,3,0,1] row_mask:0xf bank_mask:0xf")
        e(f"v_cndmask_b32 v{SP}, v{SP}, v{SP+2}, s[46:47]")
        e(f"v_cndmask_b32 v{SP+1}, v{SP+1}, v{SP+3}, s[46:47]")
        e("s_nop 0")
        e(f"v_add_f32_dpp v{SP}, v{SP}, v{SP} quad_perm:[1,0,3,2] row_mask:0xf bank_mask:0xf")
        e(f"v_add_f32_dpp v{SP+1}, v{SP+1}, v{SP+1} quad_perm:[1,0,3,2] row_mask:0xf bank_mask:0xf")
        e(f"v_cndmask_b32 {vS}, v{SP}, v{SP+1}, s[44:45]")
        c("lane (g,lam) holds the raw score of load lam, row g")
        self.bf16r(vS, vS)
        e(f"v_mul_f32 {vS}, s48, {vS}")
        self.bf16r(vS, vS)
        e(f"v_mul_f32 v{S+NI-1}, s49, {vS}")
        e(f"s_cmp_lt_u32 s53, {NI}"); e("s_cbranch_scc1 L_s_k")
        c("---- softmax numerators relative to this wave's maximum ----")
        e(f"v_max3_f32 {vM}, v{S}, v{S+1}, v{S+2}")
        for i in range(3, NI - 1, 2): e(f"v_max3_f32 {vM}, {vM}, v{S+i}, v{S+i+1}")
        e(f"v_max_f32 {vM}, {vM}, v{S+NI-1}")
        for sh in (8, 4, 2, 1):
            e("s_nop 1")
            e(f"v_max_f32_dpp {vM}, {vM}, {vM} row_ror:{sh} row_mask:0xf bank_mask:0xf")
        for n in (16, 32):
            e(f"v_mov_b32 {vA}, {vM}"); e("s_nop 1")
            e(f"v_permlane{n}_swap_b32 {vM}, {vA}"); e("s_nop 1")
            e(f"v_max_f32 {vM}, {vM}, {vA}")
        for i in range(NI): e(f"v_sub_f32 v{SP+i}, v{S+i}, {vM}")
        for i in range(NI): e(f"v_exp_f32 v{S+i}, v{SP+((i + self.vrot) % NI)}")
        e("s_nop 0")
        for i in range(NI): self.bf16r(f"v{S+i}", f"v{S+i}")
        e(f"v_add_f32 {vL}, v{S}, v{S+1}"); e(f"v_add_f32 {vT}, v{S+2}, v{S+3}")
        for i in range(4, NI, 2):
            e(f"v_add_f32 {vL}, {vL}, v{S+i}"); e(f"v_add_f32 {vT}, {vT}, v{S+i+1}")
        e(f"v_add_f32 {vL}, {vL}, {vT}")
        self.red_row(vL); self.red_swap(vL, vA, 16); self.red_swap(vL, vA, 32)
        e("s_lshl_b32 s6, s3, 3"); e(f"s_add_u32 s6, s6, {L_PML}")
        e("v_mov_b32 v10, s6")
        e("s_mov_b64 exec, 1")
        e(f"ds_write_b64 v10, v[56:57]")
        e("s_mov_b64 exec, -1")
        L("L_s_v")
        top(False)
        e(f"v_lshrrev_b32 {vPl}, 16, v{S}")
        e(f"v_mov_b32 {vS}, v{S}")
        shift()
        for i in range(NL):
            r = RING + i * 4
            e(f"s_waitcnt vmcnt({NL-1})")
            for j in range(self.pvj):
                e(f"v_dot2c_f32_bf16_dpp v{ACC+2*j}, {vPl}, v{r+j} row_newbcast:{i} row_mask:0xf bank_mask:0xf")
                e(f"v_dot2c_f32_bf16_dpp v{ACC+2*j+1}, {vS}, v{r+j} row_newbcast:{i} row_mask:0xf bank_mask:0xf")
            issue(i)
            announce(i)
        e(f"s_cmp_lt_u32 s53, {NITEMS - self.peel}"); e("s_cbranch_scc1 L_s_v")
        if self.peel:
            c("last item: nothing left to issue")
            if self.stamps: top(False)
            e(f"v_lshrrev_b32 {vPl}, 16, v{S}")
            e(f"v_mov_b32 {vS}, v{S}")
            e("s_nop 1")
            for i in range(NL):
                r = RING + i * 4
                e(f"s_waitcnt vmcnt({NL-1-i})")
                for j in range(4):
                    e(f"v_dot2c_f32_bf16_dpp v{ACC+2*j}, {vPl}, v{r+j} row_newbcast:{i} row_mask:0xf bank_mask:0xf")
                    e(f"v_dot2c_f32_bf16_dpp v{ACC+2*j+1}, {vS}, v{r+j} row_newbcast:{i} row_mask:0xf bank_mask:0xf")
        c("flush: reduce rows, write partial o")
        e("s_nop 2")
        for j in range(4):
            e(f"v_permlane32_swap_b32 v{ACC+j}, v{ACC+4+j}")
        e("s_nop 1")
        for j in range(4):
            e(f"v_add_f32 v{ACC+j}, v{ACC+j}, v{ACC+4+j}")
        e("s_nop 1")
        e(f"v_permlane16_swap_b32 v{ACC}, v{ACC+2}")
        e(f"v_permlane16_swap_b32 v{ACC+1}, v{ACC+3}")
        e("s_nop 1")
        e(f"v_add_f32 v{ACC}, v{ACC}, v{ACC+2}")
        e(f"v_add_f32 v{ACC+1}, v{ACC+1}, v{ACC+3}")
        e(f"ds_write_b64 {vPo}, v[{ACC}:{ACC+1}]")
        e("s_mov_b64 exec, 1")
        e(f"ds_add_u32 v3, v4 offset:{S_PCNT}")
        e("s_mov_b64 exec, -1")
        e("s_waitcnt lgkmcnt(0)")
        if self.stamps:
            e("s_cmp_lg_u32 s3, 0"); e("s_cbranch_scc1 L_done")
            e("v_lshlrev_b32 v166, 3, v0"); e(f"v_add_u32 v167, {L_TS}, v166")
            e("ds_read_b64 v[164:165], v167")
            e("s_lshl_b32 s6, s2, 9"); e(f"s_add_u32 s6, s6, {WS_STAMP + 0x100000:#x}")
            e("s_waitcnt lgkmcnt(0)")
            e("buffer_store_dwordx2 v[164:165], v166, s[84:87], s6 offen")

if __name__ == "__main__":
    import argparse
    ap = argparse.ArgumentParser()
    ap.add_argument("-o", dest="out", default="k.s")
    ap.add_argument("--stamps", action="store_true")
    ap.add_argument("--pf", type=int, default=32)
    ap.add_argument("--pre", type=int, default=4)
    ap.add_argument("--pfw", type=int, default=8)
    ap.add_argument("--dmaw", type=int, default=12)
    ap.add_argument("--dmaprio", type=int, default=None)
    ap.add_argument("--qdelay", type=int, default=0)
    ap.add_argument("--gp_trig", type=int, default=3)
    ap.add_argument("--zh_trig", type=int, default=6)
    ap.add_argument("--lead", type=int, default=1)
    ap.add_argument("--slowsleep", type=int, default=4)
    ap.add_argument("--fcmode", default="both")
    ap.add_argument("--stmod", default="sc1")
    ap.add_argument("--ldmod", default="sc1")
    ap.add_argument("--rdsleep", type=int, default=32)
    ap.add_argument("--rot", type=int, default=1)
    ap.add_argument("--irot", type=int, default=0)
    ap.add_argument("--dbgstamp", action="store_true")
    ap.add_argument("--fstart", type=int, default=1)
    ap.add_argument("--peers", default="oct")
    ap.add_argument("--skip", default="")
    ap.add_argument("--tight", type=int, default=99)
    ap.add_argument("--lead2", type=int, default=1)
    ap.add_argument("--adv", type=int, default=2)
    ap.add_argument("--rdpipe", type=int, default=1)
    ap.add_argument("--fmode", default="poll")
    ap.add_argument("--fper", type=int, default=1)
    ap.add_argument("--rdat", type=int, default=0)
    ap.add_argument("--rtsleep", type=int, default=2)
    ap.add_argument("--npeer", type=int, default=7)
    ap.add_argument("--gpmod", default="sc1")
    ap.add_argument("--qk", type=int, default=0)
    ap.add_argument("--ok", type=int, default=16)
    ap.add_argument("--qwarm", type=int, default=0)
    ap.add_argument("--qsleep", type=int, default=0)
    ap.add_argument("--osleep", type=int, default=4)
    ap.add_argument("--opsleep", type=int, default=0)
    ap.add_argument("--gp1", type=int, default=0)
    ap.add_argument("--gpst", default="sc1")
    ap.add_argument("--zhst", default="sc1")
    ap.add_argument("--outst", default="")
    ap.add_argument("--owarm", type=int, default=0)
    ap.add_argument("--vwarm", type=int, default=0)
    ap.add_argument("--qmod", default="nt")
    ap.add_argument("--fmod", default="nt")
    ap.add_argument("--opst", default="sc1")
    ap.add_argument("--opld", default="sc1")
    ap.add_argument("--clst", default="sc1")
    ap.add_argument("--zpipe", type=int, default=1)
    ap.add_argument("--zpd", type=int, default=2)
    ap.add_argument("--opipe", type=int, default=1)
    ap.add_argument("--opd", type=int, default=8)
    ap.add_argument("--anyof", type=int, default=1)
    ap.add_argument("--oddlight", type=int, default=0)
    ap.add_argument("--px", type=int, default=0)
    ap.add_argument("--numa", default="")
    ap.add_argument("--wodef", type=int, default=0)
    ap.add_argument("--dndef", type=int, default=0)
    ap.add_argument("--wo_trig", type=int, default=31)
    ap.add_argument("--dn_trig", type=int, default=31)
    ap.add_argument("--wosleep", type=int, default=0)
    ap.add_argument("--wowarm", type=int, default=0)
    ap.add_argument("--woearly", type=int, default=0)
    ap.add_argument("--pvj", type=int, default=4)
    ap.add_argument("--peel", type=int, default=1)
    ap.add_argument("--qexact", type=int, default=1)
    ap.add_argument("--vrot", type=int, default=0)
    ap.add_argument("--fsleep", type=int, default=0)
    ap.add_argument("--fw", type=int, default=0)
    ap.add_argument("--fpsleep", type=int, default=0)
    ap.add_argument("--o2k", type=int, default=0)
    ap.add_argument("--z2", type=int, default=0)
    ap.add_argument("--diagc", type=int, default=0)
    ap.add_argument("--iw", type=int, default=0)
    ap.add_argument("--cps", default="1,5,9,13,17,21,25,27,29")
    a = ap.parse_args()
    open(a.out, "w").write(Gen(a).build())
```
